```python
import torch

def _softmax(x, axis=-1):
    return torch.softmax(x, dim=axis)
def _gelu(x):
    return torch.nn.functional.gelu(x, approximate="tanh")
def _silu(x):
    return torch.nn.functional.silu(x)
def _sigmoid(x):
    return torch.sigmoid(x)
def _layernorm(x, axis=-1, eps=1e-5):
    m = x.mean(dim=axis, keepdim=True)
    v = x.var(dim=axis, keepdim=True, unbiased=False)
    return (x - m) / torch.sqrt(v + eps)
def _scatter_add(tgt, idx, src, axis=0):
    return tgt.clone().index_add_(axis, idx, src)
def _segment_sum(src, seg, n):
    out = torch.zeros((n,) + src.shape[1:], dtype=src.dtype)
    return out.index_add_(0, seg, src)
def _pad(x, pw):
    flat = tuple(v for pair in reversed(pw) for v in pair)
    return torch.nn.functional.pad(x, flat)

kernel_name = 'concat_heads__ssm_conv_s4__linear_kernel_hedgehog__prompt'

def setup_inputs():

    _w = (lambda a: (lambda t: t.to(torch.bfloat16) if t.is_floating_point() else t)(torch.as_tensor(a)))
    def _A_setup():
        B, L, D, N = 1, 2048, 448, 256
        A_re = -(lambda _x: torch.exp(torch.as_tensor(_x)))((lambda *s: torch.randn(*s, dtype=torch.bfloat16) * 3.2)(D, N))
        A_im = torch.pi * (lambda *s: torch.randn(*s, dtype=torch.bfloat16) * 0.2)(D, N)
        B_re = (lambda *s: torch.randn(*s, dtype=torch.bfloat16) * 0.4)(D, N)
        B_im = (lambda *s: torch.randn(*s, dtype=torch.bfloat16) * 0.4)(D, N)
        C_re = (lambda *s: torch.randn(*s, dtype=torch.bfloat16) * 0.4)(D, N)
        C_im = (lambda *s: torch.randn(*s, dtype=torch.bfloat16) * 0.4)(D, N)
        log_dt = (lambda *s: torch.randn(*s, dtype=torch.bfloat16) * 0.2)(D) * 0.5 - 4.0
        Dskip = (lambda *s: torch.randn(*s, dtype=torch.bfloat16) * 0.4)(D)
        return {
            "u": _w((lambda *s: torch.randn(*s, dtype=torch.bfloat16) * 0.05)(B, L, D)),
            "A_re": _w(A_re),
            "A_im": _w(A_im),
            "B_re": _w(B_re),
            "B_im": _w(B_im),
            "C_re": _w(C_re),
            "C_im": _w(C_im),
            "log_dt": _w(log_dt),
            "Dskip": _w(Dskip),
        }
    _A_in = _A_setup()

    def _B_setup():
        B, S, D, H = 1, 2048, 448, 16
        Dh = D // H
        return {
            "x": _w((lambda *s: torch.randn(*s, dtype=torch.bfloat16) * 0.4)(B, S, D)),
            "wqkv": _w((lambda *s: torch.randn(*s, dtype=torch.bfloat16) * 0.4)(D, 3 * D)),
            "w_phi": _w((lambda *s: torch.randn(*s, dtype=torch.bfloat16) * 0.4)(H, Dh, Dh) * (Dh ** -0.5)),
            "wo": _w((lambda *s: torch.randn(*s, dtype=torch.bfloat16) * 0.05)(D, D)),
        }
    _B_in = _B_setup()

    return {
        "A_u": _A_in["u"],
        "A_A_re": _A_in["A_re"],
        "A_A_im": _A_in["A_im"],
        "A_B_re": _A_in["B_re"],
        "A_B_im": _A_in["B_im"],
        "A_C_re": _A_in["C_re"],
        "A_C_im": _A_in["C_im"],
        "A_log_dt": _A_in["log_dt"],
        "A_Dskip": _A_in["Dskip"],
        "B_x": _B_in["x"],
        "B_wqkv": _B_in["wqkv"],
        "B_w_phi": _B_in["w_phi"],
        "B_wo": _B_in["wo"],
    }

def reference(A_u, A_A_re, A_A_im, A_B_re, A_B_im, A_C_re, A_C_im, A_log_dt, A_Dskip, B_x, B_wqkv, B_w_phi, B_wo):
    def _A_ref(u, A_re, A_im, B_re, B_im, C_re, C_im, log_dt, Dskip):
        Bsz, L, D = u.shape
        dt = torch.exp(log_dt)[:, None]
        A = A_re + 1j * A_im
        Bc = B_re + 1j * B_im
        Cc = C_re + 1j * C_im
        logdA = dt * A
        dB = dt * Bc
        l = (lambda x, dt: x.to(dt))(torch.arange(L), A_re.dtype)
        P = torch.exp(logdA[:, :, None] * l[None, None, :])
        K = torch.einsum("dn,dnl,dn->dl", Cc, P, dB).real
        L2 = 2 * L
        Kp = _pad(K, ((0, 0), (0, L)))
        up = (lambda x, *d: x.permute(*d))(u, 0, 2, 1)
        up = _pad(up, ((0, 0), (0, 0), (0, L)))
        Kf = (lambda x, axes=(-2,-1): torch.fft.rfft2(x.float(), dim=axes))(Kp[:, None, :], axes=(-2, -1))
        Uf = (lambda x, axes=(-2,-1): torch.fft.rfft2(x.float(), dim=axes))(up[:, :, None, :], axes=(-2, -1))
        Yf = Uf * Kf[None, :, :, :]
        y = (lambda x, s, axes=(-2,-1): torch.fft.irfft2(x, s=s, dim=axes).to(torch.bfloat16))(Yf, (1, L2), axes=(-2, -1))[:, :, 0, :L]
        y = (lambda x, *d: x.permute(*d))(y, 0, 2, 1) + u * Dskip[None, None, :]
        return y

    def _B_ref(x, wqkv, w_phi, wo):
        B, S, D = x.shape
        H = 16; Dh = D // H
        qkv = (lambda x, *d: x.permute(*d))((x @ wqkv).reshape(B, S, 3, H, Dh), 2, 0, 3, 1, 4)
        q, k, v = qkv[0], qkv[1], qkv[2]
        pq = torch.einsum("bhsd,hdf->bhsf", q, w_phi)
        pk = torch.einsum("bhsd,hdf->bhsf", k, w_phi)
        phi_q = torch.concatenate([_softmax(pq, axis=-1), _softmax(-pq, axis=-1)], axis=-1)
        phi_k = torch.concatenate([_softmax(pk, axis=-1), _softmax(-pk, axis=-1)], axis=-1)
        kv = torch.einsum("bhsf,bhsd->bhfd", phi_k, v)
        z  = torch.einsum("bhsf->bhf", phi_k)
        num = torch.einsum("bhqf,bhfd->bhqd", phi_q, kv)
        den = torch.einsum("bhqf,bhf->bhq", phi_q, z)[..., None] + 1e-6
        o = num / den
        return (lambda x, *d: x.permute(*d))(o, 0, 2, 1, 3).reshape(B, S, D) @ wo

    a = _A_ref(A_u, A_A_re, A_A_im, A_B_re, A_B_im, A_C_re, A_C_im, A_log_dt, A_Dskip)
    b = _B_ref(B_x, B_wqkv, B_w_phi, B_wo)
    return torch.concatenate([a, b], axis=-1)
```

```python
import sys
import numpy as np

NAME = "concat_heads__ssm_conv_s4__linear_kernel_hedgehog__prompt"
KNAME = NAME + "_kernel"

class Opt:
    profile = False
    do_a = True
    do_b = True
    spin_limit = 100000
    codepf = True
    xpf = False
    stagger = True
    clamp = False
    psleep = 4
    usleep = 16
    h2_late = True
    h2_stop = 9
    fsh = 7
    prio = 0
    no_kgen = False
    no_h2 = False
    a_level = 3
    xpf2 = False

OFF_EPOCH = 0
OFF_CF = 0x11000
OFF_UF = 0x19000
OFF_YF = 0x21000
OFF_PROF = 0x40000
OFF_PART = 0x100000
OFF_OBUF = 0x200000
OFF_UT = 0x400000
UT_PITCH = 4224
OFF_YT = 0x600000
WS_BYTES = 256 << 20

class E:
    def __init__(self):
        self.lines = []
        self.nlab = 0
    def __call__(self, s):
        for ln in s.strip("\n").split("\n"):
            self.lines.append("  " + ln.strip())
    def label(self, name):
        self.lines.append(name + ":")
    def newlab(self, p="L"):
        self.nlab += 1
        return "%s_%d" % (p, self.nlab)
    def c(self, s):
        self.lines.append("  ; " + s)
    def text(self):
        return "\n".join(self.lines) + "\n"

def vr(b, n=1):
    return "v%d" % b if n == 1 else "v[%d:%d]" % (b, b + n - 1)

S_U, S_ARE, S_AIM, S_BRE, S_BIM, S_CRE, S_CIM, S_LDT = 8, 10, 12, 14, 16, 18, 20, 22
S_DSK, S_X, S_W, S_WPHI, S_WO, S_OUT, S_DBG, S_WS = 24, 26, 28, 30, 32, 34, 36, 38
S_WAVE, S_TAG, S_EP = 3, 4, 5
R_X, R_W, R_WS, R_WO, R_OUT, R_WPHI = 40, 44, 48, 52, 56, 60
S_PROF0 = 80
L2E = 0x3fb8aa3b
NL2E = 0xbfb8aa3b

def srd(e, r, sbase, nbytes):
    e(f"s_mov_b32 s{r}, s{sbase}")
    e(f"s_and_b32 s{r+1}, s{sbase+1}, 0xffff")
    e(f"s_mov_b32 s{r+2}, {nbytes}")
    e(f"s_mov_b32 s{r+3}, 0x20000")
def rs(r):
    return f"s[{r}:{r+3}]"

class Prof:
    def __init__(self, e, o, slot):
        self.e, self.o, self.n, self.slot = e, o, 0, slot
    def stamp(self):
        if not self.o.profile: return
        assert self.n < 10
        r = S_PROF0 + 2 * self.n
        self.e(f"s_memrealtime s[{r}:{r+1}]")
        self.n += 1
    def flush(self, vtmp, stmp):
        if not self.o.profile: return
        e = self.e
        e("s_waitcnt lgkmcnt(0)")
        e(f"s_lshl_b32 s{stmp}, s2, 8")
        e(f"s_add_u32 s{stmp}, s{stmp}, {OFF_PROF + self.slot * 64}")
        e(f"v_mov_b32 v{vtmp}, s{stmp}")
        for i in range(self.n):
            e(f"v_mov_b32 v{vtmp+1}, s{S_PROF0+2*i}")
            e(f"buffer_store_dword v{vtmp+1}, v{vtmp}, {rs(R_WS)}, 0 offen offset:{4*i}")
            e("s_nop 1")

def calc_tag(e):
    e(f"s_mul_i32 s{S_TAG}, s{S_EP}, 0x9e3779b1")
    e(f"s_add_u32 s{S_TAG}, s{S_TAG}, 0x85ebca6b")

def poll_eq_tag(e, o, vaddr, vtmp, first_issued=False, sleep=None):
    lp = e.newlab("Lpoll"); dn = e.newlab("Lpdone")
    e("s_mov_b32 s6, 0")
    e.label(lp)
    e(f"buffer_load_dword v{vtmp}, v{vaddr}, {rs(R_WS)}, 0 offen sc1")
    e("s_add_u32 s6, s6, 1")
    e("s_waitcnt vmcnt(0)")
    e(f"v_cmp_ne_u32 vcc, s{S_TAG}, v{vtmp}")
    e(f"s_cmp_gt_u32 s6, {o.spin_limit}")
    e(f"s_cbranch_scc1 {dn}")
    e(f"s_cbranch_vccz {dn}")
    e("s_mov_b64 exec, vcc")
    e(f"s_sleep {sleep if sleep is not None else o.psleep}")
    e(f"s_branch {lp}")
    e.label(dn)
    e("s_mov_b64 exec, -1")

def poll_not_poison(e, o, vaddr, soff, vtmp):
    lp = e.newlab("Lsp"); dn = e.newlab("Lsdone")
    e("s_mov_b32 s6, 0")
    e.label(lp)
    e(f"buffer_load_dword v{vtmp}, v{vaddr}, {rs(R_WS)}, s{soff} offen sc1")
    e("s_add_u32 s6, s6, 1")
    e("s_waitcnt vmcnt(0)")
    e(f"v_cmp_eq_u32 vcc, -1, v{vtmp}")
    e(f"s_cmp_gt_u32 s6, {o.spin_limit}")
    e(f"s_cbranch_scc1 {dn}")
    e(f"s_cbranch_vccnz {lp}")
    e.label(dn)

SLOT = 14336
IMG_PITCH = 72
IMG_SZ = 128 * IMG_PITCH
LDS_PHI = 75648
LDS_ZERO = LDS_PHI + 2048
LDS_KVX = LDS_ZERO + 128
assert LDS_KVX + 4096 == 81920
IMG_BASE = LDS_PHI - 3 * IMG_SZ
IMG_P, IMG_N, IMG_V = 0, IMG_SZ, 2 * IMG_SZ
WO_EARLY = IMG_BASE // 4096

S_XCD, S_IDX, S_RB, S_H, S_TB, S_CB = 64, 65, 66, 67, 68, 69
S_T, S_T2, S_T3, S_CNT, S_SL, S_XOFF, S_WOFF, S_M = 70, 71, 72, 73, 74, 75, 76, 77
S_L2E, S_NL2E = 78, 100

def decode_b(e, wgreg):
    e(f"""s_and_b32 s{S_XCD}, s{wgreg}, 7
    s_lshr_b32 s{S_IDX}, s{wgreg}, 3
    s_lshr_b32 s{S_RB}, s{S_XCD}, 1
    s_lshl_b32 s{S_RB}, s{S_RB}, 2
    s_and_b32 s{S_T}, s{S_IDX}, 3
    s_add_u32 s{S_RB}, s{S_RB}, s{S_T}
    s_and_b32 s{S_H}, s{S_XCD}, 1
    s_lshl_b32 s{S_H}, s{S_H}, 3
    s_lshr_b32 s{S_CB}, s{S_IDX}, 2
    s_add_u32 s{S_H}, s{S_H}, s{S_CB}
    s_lshl_b32 s{S_TB}, s{S_XCD}, 2
    s_add_u32 s{S_TB}, s{S_TB}, s{S_T}""")

def gen_b_loader(e, o):
    VX, VW = 2, 3
    VT0, VT1, VT2, VT3 = 10, 11, 12, 13
    VFL, VFA = 14, 15
    VWA, VWB, VWC = 16, 17, 18
    e.c("B loader waves")
    if o.stagger:
        e(f"""s_and_b32 s{S_T}, s{S_IDX}, 3
        s_mul_i32 s{S_T2}, s{S_CB}, 7
        s_lshr_b32 s{S_T2}, s{S_T2}, 2
        s_mul_i32 s{S_T}, s{S_T}, 7
        s_lshr_b32 s{S_T}, s{S_T}, 1
        s_add_u32 s{S_SL}, s{S_T}, s{S_T2}
        s_cmp_ge_u32 s{S_SL}, 14
        s_cselect_b32 s{S_T}, 14, 0
        s_sub_u32 s{S_SL}, s{S_SL}, s{S_T}""")
    else:
        e(f"s_mov_b32 s{S_SL}, 0")
    e(f"s_cmp_eq_u32 s{S_WAVE}, 5")
    e("s_cbranch_scc1 Lb_ldw")
    P = Prof(e, o, 1)
    e(f"""v_lshrrev_b32 v{VT0}, 2, v1
    v_lshrrev_b32 v{VT1}, 4, v1
    v_and_b32 v{VT2}, 3, v1
    v_xor_b32 v{VT1}, v{VT1}, v{VT2}
    v_and_b32 v{VT1}, 3, v{VT1}
    v_lshlrev_b32 v{VT1}, 4, v{VT1}
    s_lshl_b32 s{S_T}, s{S_RB}, 7
    v_add_u32 v{VT0}, s{S_T}, v{VT0}
    v_mul_u32_u24 v{VT0}, 896, v{VT0}
    v_add_u32 v{VX}, v{VT0}, v{VT1}
    s_lshl_b32 s{S_XOFF}, s{S_SL}, 6
    s_mov_b32 s{S_M}, 0
    s_mov_b32 s{S_CNT}, 0""")
    e("s_waitcnt lgkmcnt(0)")
    srd(e, R_X, S_X, 2048 * 896)
    srd(e, R_WS, S_WS, WS_BYTES)
    srd(e, R_WO, S_WO, 448 * 896)
    P.stamp()
    lp = e.newlab("Lldx"); skipw = e.newlab("Lldxn")
    e.label(lp)
    e(f"s_cmp_lt_u32 s{S_CNT}, 3")
    e(f"s_cbranch_scc1 {skipw}")
    e("s_waitcnt vmcnt(16)")
    e("s_barrier")
    e.label(skipw)
    for j in range(8):
        if j == 0:
            e(f"s_mov_b32 m0, s{S_M}")
            e(f"s_add_u32 s{S_T}, s{S_XOFF}, 14336")
            e(f"buffer_load_dwordx4 v{VX}, {rs(R_X)}, s{S_XOFF} offen lds")
        else:
            e(f"s_add_u32 m0, m0, 1024")
            if j < 7:
                e(f"s_add_u32 s{S_T2 if j % 2 else S_T}, s{S_T if j % 2 else S_T2}, 14336")
            else:
                e(f"s_add_u32 s{S_XOFF}, s{S_XOFF}, 64")
            e(f"buffer_load_dwordx4 v{VX}, {rs(R_X)}, s{S_T if j % 2 else S_T2} offen lds")
    e(f"""s_add_u32 s{S_M}, s{S_M}, {SLOT}
    s_cmp_eq_u32 s{S_XOFF}, 896
    s_cselect_b32 s{S_XOFF}, 0, s{S_XOFF}
    s_cmp_eq_u32 s{S_M}, {4*SLOT}
    s_cselect_b32 s{S_M}, 0, s{S_M}
    s_add_u32 s{S_CNT}, s{S_CNT}, 1
    s_cmp_lt_u32 s{S_CNT}, 14
    s_cbranch_scc1 {lp}""")
    e("s_waitcnt vmcnt(16)")
    e("s_barrier")
    e("s_waitcnt vmcnt(8)")
    e("s_barrier")
    e("s_waitcnt vmcnt(0)")
    e("s_barrier")
    P.stamp()
    e("s_barrier")
    P.stamp()
    e(f"""v_lshrrev_b32 v{VT0}, 3, v1          ; row_local
    v_and_b32 v{VT1}, 7, v1               ; chunk
    v_lshrrev_b32 v{VT2}, 1, v{VT1}       ; p32
    v_and_b32 v{VT1}, 1, v{VT1}
    v_lshlrev_b32 v{VT1}, 4, v{VT1}       ; half*16
    v_lshrrev_b32 v{VT3}, 1, v{VT0}
    v_and_b32 v{VT3}, 1, v{VT3}
    v_xor_b32 v{VT2}, v{VT2}, v{VT3}
    v_mul_u32_u24 v{VT0}, 896, v{VT0}
    s_lshl_b32 s{S_T}, s{S_CB}, 7
    v_add3_u32 v{VT0}, v{VT0}, v{VT1}, s{S_T}
    v_lshlrev_b32 v{VT3}, 5, v{VT2}
    v_add_u32 v{VWA}, v{VT0}, v{VT3}
    v_xor_b32 v{VT2}, 2, v{VT2}
    v_lshlrev_b32 v{VT3}, 5, v{VT2}
    v_add_u32 v{VWB}, v{VT0}, v{VT3}
    v_mov_b32 v{VT3}, 0x7ffffff0
    v_cmp_lt_u32 vcc, 31, v1
    s_nop 1
    v_cndmask_b32 v{VWC}, v{VWB}, v{VT3}, vcc""")
    def wo_loop(h0, h1):
        lp = e.newlab("Lwo")
        e(f"s_mov_b32 s{S_CNT}, {h0}")
        e(f"s_mov_b32 s{S_T}, {h0*28*896}")
        e(f"s_mov_b32 m0, {h0*4096}")
        e.label(lp)
        e(f"""s_add_u32 s{S_T2}, s{S_T}, {8*896}
        buffer_load_dwordx4 v{VWA}, {rs(R_WO)}, s{S_T} offen lds
        s_add_u32 m0, m0, 1024
        s_add_u32 s{S_T3}, s{S_T}, {16*896}
        buffer_load_dwordx4 v{VWA}, {rs(R_WO)}, s{S_T2} offen lds
        s_add_u32 m0, m0, 1024
        s_add_u32 s{S_T2}, s{S_T}, {24*896}
        buffer_load_dwordx4 v{VWB}, {rs(R_WO)}, s{S_T3} offen lds
        s_add_u32 m0, m0, 1024
        s_add_u32 s{S_T}, s{S_T}, {28*896}
        buffer_load_dwordx4 v{VWC}, {rs(R_WO)}, s{S_T2} offen lds
        s_add_u32 m0, m0, 1024
        s_add_u32 s{S_CNT}, s{S_CNT}, 1
        s_cmp_lt_u32 s{S_CNT}, {h1}
        s_cbranch_scc1 {lp}""")
    nowo = e.newlab("Lnowo"); nowo2 = e.newlab("Lnowo2"); fin = e.newlab("Lldfin")
    e(f"s_cmp_eq_u32 s{S_CB}, 7")
    e(f"s_cbranch_scc1 {nowo}")
    wo_loop(0, WO_EARLY)
    e.label(nowo)
    e("s_barrier")
    e("s_barrier")
    e(f"s_cmp_eq_u32 s{S_CB}, 7")
    e(f"s_cbranch_scc1 {nowo2}")
    wo_loop(WO_EARLY, 16)
    e.label(nowo2)
    e("s_barrier")
    e(f"s_cmp_eq_u32 s{S_CB}, 7")
    e(f"s_cbranch_scc1 {fin}")
    e("s_waitcnt vmcnt(0)")
    P.stamp()
    e("s_barrier")
    e.label(fin)
    P.flush(20, S_T)
    e("s_endpgm")
    e.label("Lb_ldw")
    e(f"s_mul_i32 s{S_T2}, s{S_H}, 56")
    for j in range(6):
        e(f"""v_add_u32 v{VT0}, {64*j}, v1
        v_mul_u32_u24 v{VT1}, 683, v{VT0}
        v_lshrrev_b32 v{VT1}, 13, v{VT1}
        v_mul_u32_u24 v{VT2}, 12, v{VT1}
        v_sub_u32 v{VT2}, v{VT0}, v{VT2}
        v_mul_u32_u24 v{VT1}, 2688, v{VT1}
        v_lshrrev_b32 v{VT3}, 2, v{VT2}
        v_mul_u32_u24 v{VT3}, 896, v{VT3}
        v_and_b32 v{VT2}, 3, v{VT2}
        v_lshlrev_b32 v{VT2}, 4, v{VT2}
        v_add3_u32 v{VT1}, v{VT1}, v{VT3}, v{VT2}
        v_add_u32 v{VW+j}, s{S_T2}, v{VT1}""")
    e(f"""s_mul_i32 s{S_WOFF}, s{S_SL}, 86016
    s_mov_b32 s{S_M}, 8192
    s_mov_b32 s{S_CNT}, 0""")
    e("s_waitcnt lgkmcnt(0)")
    srd(e, R_W, S_W, 448 * 2688)
    srd(e, R_WPHI, S_WPHI, 16 * 1568)
    srd(e, R_WS, S_WS, WS_BYTES)
    e(f"s_load_dword s{S_EP}, s[{S_WS}:{S_WS+1}], 0")
    e(f"""s_mul_i32 s{S_T}, s{S_H}, 1568
    v_lshlrev_b32 v{VT0}, 4, v1
    s_mov_b32 m0, {LDS_PHI}
    s_add_u32 s{S_T2}, s{S_T}, 1024""")
    lp = e.newlab("Lldw"); skipw = e.newlab("Lldwn")
    e.label(lp)
    e(f"s_cmp_lt_u32 s{S_CNT}, 3")
    e(f"s_cbranch_scc1 {skipw}")
    e("s_waitcnt vmcnt(12)")
    if o.profile:
        e("s_memrealtime s[80:81]")
        e("s_waitcnt lgkmcnt(0)")
        e(f"v_cmp_eq_u32 vcc, s{S_CNT}, v1")
        e("v_mov_b32 v29, s80")
        e("s_nop 0")
        e("v_cndmask_b32 v30, v30, v29, vcc")
    e("s_barrier")
    if o.profile:
        e("s_memrealtime s[80:81]")
        e("s_waitcnt lgkmcnt(0)")
        e("v_mov_b32 v29, s80")
        e("s_nop 0")
        e("v_cndmask_b32 v31, v31, v29, vcc")
    e.label(skipw)
    for j in range(6):
        if j == 0:
            e(f"s_mov_b32 m0, s{S_M}")
            e(f"s_add_u32 s{S_M}, s{S_M}, {SLOT}")
        else:
            e(f"s_add_u32 m0, m0, 1024")
            e("s_nop 0")
        e(f"buffer_load_dwordx4 v{VW+j}, {rs(R_W)}, s{S_WOFF} offen lds")
    npz = e.newlab("Lnphi")
    e(f"""s_add_u32 s{S_WOFF}, s{S_WOFF}, 86016
    s_cmp_eq_u32 s{S_WOFF}, {14*86016}
    s_cselect_b32 s{S_WOFF}, 0, s{S_WOFF}
    s_cmp_eq_u32 s{S_M}, {4*SLOT + 8192}
    s_cselect_b32 s{S_M}, 8192, s{S_M}
    s_add_u32 s{S_CNT}, s{S_CNT}, 1
    s_cmp_lt_u32 s{S_CNT}, 14
    s_cbranch_scc1 {lp}""")
    e(f"""s_mov_b32 m0, {LDS_PHI}
    s_nop 0
    buffer_load_dwordx4 v{VT0}, {rs(R_WPHI)}, s{S_T} offen lds
    s_mov_b32 m0, {LDS_PHI + 1024}
    s_nop 0
    buffer_load_dwordx4 v{VT0}, {rs(R_WPHI)}, s{S_T2} offen lds
    v_mov_b32 v16, -1
    v_mov_b32 v17, -1
    v_mov_b32 v18, -1
    v_mov_b32 v19, -1
    s_lshl_b32 s{S_T3}, s{S_H}, 4
    s_add_u32 s{S_T3}, s{S_T3}, s{S_RB}
    s_lshl_b32 s{S_T2}, s{S_T3}, 12
    s_add_u32 s{S_T2}, s{S_T2}, {OFF_PART}""")
    for i in range(4):
        e(f"buffer_store_dwordx4 {vr(16,4)}, v{VT0}, {rs(R_WS)}, s{S_T2} offen offset:{1024*i} sc1")
    e(f"""s_lshl_b32 s{S_T2}, s{S_RB}, 7
    s_add_u32 s{S_T2}, s{S_T2}, s{S_H}
    s_lshl_b32 s{S_T2}, s{S_T2}, 10
    s_add_u32 s{S_T2}, s{S_T2}, {OFF_OBUF}""")
    for i in range(8):
        e(f"buffer_store_dwordx4 {vr(16,4)}, v{VT0}, {rs(R_WS)}, s{S_T2} offen sc1")
        if i < 7: e(f"s_add_u32 s{S_T2}, s{S_T2}, 16384")
    e("""s_waitcnt vmcnt(26)
    s_barrier
    s_waitcnt vmcnt(20)
    s_barrier
    s_waitcnt vmcnt(14)
    s_barrier
    s_waitcnt vmcnt(12)
    s_barrier""")
    if o.profile:
        e(f"""s_lshl_b32 s{S_T}, s2, 8
        s_add_u32 s{S_T}, s{S_T}, {OFF_PROF + 128}
        v_lshlrev_b32 v20, 2, v1
        s_mov_b32 exec_hi, 0
        s_mov_b32 exec_lo, 0xffff
        buffer_store_dword v30, v20, {rs(R_WS)}, s{S_T} offen
        buffer_store_dword v31, v20, {rs(R_WS)}, s{S_T} offen offset:64
        s_mov_b64 exec, -1""")
    e("s_waitcnt vmcnt(0) lgkmcnt(0)")
    calc_tag(e)
    e(f"""s_lshl_b32 s{S_T3}, s{S_T3}, {o.fsh}
    s_add_u32 s{S_T3}, s{S_T3}, {OFF_CF}
    v_mov_b32 v{VT1}, s{S_T3}
    v_mov_b32 v{VT2}, s{S_TAG}
    s_mov_b64 exec, 1
    buffer_store_dword v{VT2}, v{VT1}, {rs(R_WS)}, 0 offen sc1
    s_mov_b64 exec, -1
    s_barrier""")
    e(f"""v_and_b32 v{VT0}, 15, v1
    s_lshl_b32 s{S_T}, s{S_H}, 4
    v_add_u32 v{VT1}, s{S_T}, v{VT0}
    v_lshlrev_b32 v{VT2}, 4, v{VT0}
    s_lshr_b32 s{S_T2}, s{S_TB}, 1
    v_add_u32 v{VT2}, s{S_T2}, v{VT2}
    v_lshrrev_b32 v{VT3}, 4, v1
    v_and_b32 v{VT3}, 1, v{VT3}
    v_cmp_eq_u32 vcc, 1, v{VT3}
    s_nop 1
    v_cndmask_b32 v{VT1}, v{VT1}, v{VT2}, vcc
    v_lshlrev_b32 v{VT1}, {o.fsh}, v{VT1}
    v_add_u32 v{VFA}, {OFF_CF}, v{VT1}
    s_mov_b32 exec_hi, 0""")
    poll_eq_tag(e, o, VFA, VFL)
    e("s_barrier")
    e("s_endpgm")

def gen_b(e, o):
    e.c("B role")
    if o.prio: e(f"s_setprio {o.prio}")
    decode_b(e, 2)
    e(f"s_cmp_ge_u32 s{S_WAVE}, 4")
    e("s_cbranch_scc1 Lb_loader")
    P = Prof(e, o, 0)
    VAX0, VAX1, VAW, VAIMG, VATR, VAPHI1, VAPHI2, VNINF = 2, 3, 4, 5, 6, 7, 8, 9
    VT0, VT1, VT2, VT3 = 10, 11, 12, 13
    VPF = 14
    ACC_K, ACC_V, ACC_Q = 16, 32, 48
    FA, FB = 64, 80
    APHI = 96
    S_MX = S_T3
    e(f"""s_mov_b32 s{S_L2E}, {L2E:#x}
    s_mov_b32 s{S_L2E+1}, {L2E:#x}
    s_mov_b32 s{S_NL2E}, {NL2E:#x}
    s_mov_b32 s{S_NL2E+1}, {NL2E:#x}""")
    def pf_x(j, vd):
        e(f"""s_lshl_b32 s{S_T}, s{S_IDX}, 6
        s_add_u32 s{S_T}, s{S_T}, {2048*j}
        v_add_u32 v{VT0}, s{S_T}, v1
        v_min_u32 v{VT0}, 7167, v{VT0}
        v_and_b32 v{VT1}, 511, v{VT0}
        s_lshr_b32 s{S_T2}, s{S_XCD}, 1
        s_lshl_b32 s{S_T2}, s{S_T2}, 9
        v_add_u32 v{VT1}, s{S_T2}, v{VT1}
        v_mul_u32_u24 v{VT1}, 896, v{VT1}
        v_lshrrev_b32 v{VT0}, 9, v{VT0}
        v_lshl_add_u32 v{VT0}, v{VT0}, 6, v{VT1}
        global_load_dword v{vd}, v{VT0}, s[{S_X}:{S_X+1}]""")
    def pf_w(j, vd):
        e(f"""s_lshl_b32 s{S_T}, s{S_IDX}, 6
        s_add_u32 s{S_T}, s{S_T}, {2048*j}
        v_add_u32 v{VT0}, s{S_T}, v1
        v_min_u32 v{VT0}, 9407, v{VT0}
        v_mul_u32_u24 v{VT1}, 3121, v{VT0}
        v_lshrrev_b32 v{VT1}, 16, v{VT1}          ; kr = n/21
        v_mul_u32_u24 v{VT2}, 21, v{VT1}
        v_sub_u32 v{VT2}, v{VT0}, v{VT2}          ; c
        v_mul_u32_u24 v{VT3}, 37, v{VT2}
        v_lshrrev_b32 v{VT3}, 8, v{VT3}           ; seg = c/7
        v_mul_u32_u24 v{VT0}, 7, v{VT3}
        v_sub_u32 v{VT2}, v{VT2}, v{VT0}          ; sec
        v_mul_u32_u24 v{VT1}, 2688, v{VT1}
        v_mul_u32_u24 v{VT3}, 896, v{VT3}
        v_lshlrev_b32 v{VT2}, 6, v{VT2}
        v_add3_u32 v{VT1}, v{VT1}, v{VT3}, v{VT2}
        s_and_b32 s{S_T2}, s{S_XCD}, 1
        s_mul_i32 s{S_T2}, s{S_T2}, 448
        v_add_u32 v{VT1}, s{S_T2}, v{VT1}
        global_load_dword v{vd}, v{VT1}, s[{S_W}:{S_W+1}]""")
    def by_wave(fns):
        end = e.newlab("Lwe")
        labs = [e.newlab("Lw") for _ in range(4)]
        for w in range(1, 4):
            e(f"s_cmp_eq_u32 s{S_WAVE}, {w}")
            e(f"s_cbranch_scc1 {labs[w]}")
        for w in range(4):
            e.label(labs[w])
            fns[w]()
            if w < 3: e(f"s_branch {end}")
        e.label(end)
    e("s_waitcnt lgkmcnt(0)")
    srd(e, R_WS, S_WS, WS_BYTES)
    P.stamp()
    if o.xpf:
        by_wave([lambda: pf_x(0, VPF), lambda: pf_w(0, VPF), lambda: pf_w(1, VPF), lambda: pf_x(1, VPF)])
        e("s_barrier")
        by_wave([lambda: (pf_w(2, VPF + 1)), lambda: (pf_x(2, VPF + 1), pf_w(4, VPF + 1)), lambda: pf_w(3, VPF + 1), lambda: pf_x(3, VPF + 1)])
    e(f"""s_lshl_b32 s{S_MX}, s{S_WAVE}, 11
    v_and_b32 v{VT0}, 31, v1
    v_lshrrev_b32 v{VT1}, 5, v1
    v_lshrrev_b32 v{VT2}, 2, v{VT0}
    v_and_b32 v{VT2}, 3, v{VT2}
    v_xor_b32 v{VT2}, v{VT2}, v{VT1}
    v_lshlrev_b32 v{VT2}, 4, v{VT2}
    v_lshlrev_b32 v{VT3}, 6, v{VT0}
    v_add3_u32 v{VAX0}, v{VT3}, v{VT2}, s{S_MX}
    v_xor_b32 v{VAX1}, 32, v{VAX0}
    s_lshl_b32 s{S_T}, s{S_WAVE}, 5
    v_add_u32 v{VT3}, s{S_T}, v{VT0}
    v_mul_u32_u24 v{VT3}, {IMG_PITCH}, v{VT3}
    v_lshlrev_b32 v{VT2}, 3, v{VT1}
    v_add_u32 v{VT3}, {IMG_BASE}, v{VT3}
    v_add_u32 v{VAIMG}, v{VT3}, v{VT2}
    v_lshrrev_b32 v{VT0}, 5, v1
    v_lshlrev_b32 v{VT0}, 3, v{VT0}
    v_lshrrev_b32 v{VT1}, 2, v1
    v_and_b32 v{VT1}, 3, v{VT1}          ; r
    v_add_u32 v{VT0}, v{VT0}, v{VT1}     ; row = 8*(j>>1)+r
    v_lshrrev_b32 v{VT2}, 4, v1
    v_and_b32 v{VT2}, 1, v{VT2}
    v_lshlrev_b32 v{VT2}, 5, v{VT2}
    v_and_b32 v{VT3}, 3, v1
    v_lshlrev_b32 v{VT3}, 3, v{VT3}
    v_add_u32 v{VT2}, v{VT2}, v{VT3}
    v_mul_u32_u24 v{VT3}, 192, v{VT0}
    v_add3_u32 v{VAW}, v{VT3}, v{VT2}, 0
    v_add_u32 v{VAW}, 8192, v{VAW}
    v_mul_u32_u24 v{VT3}, {IMG_PITCH}, v{VT0}
    v_add_u32 v{VT3}, {IMG_BASE}, v{VT3}
    v_add_u32 v{VATR}, v{VT3}, v{VT2}
    v_lshrrev_b32 v{VT0}, 5, v1
    v_lshlrev_b32 v{VT0}, 2, v{VT0}
    v_add_u32 v{VT0}, v{VT0}, v{VT1}     ; 4*hi + r
    v_mul_u32_u24 v{VT0}, 56, v{VT0}
    v_add_u32 v{VT0}, v{VT0}, v{VT2}
    v_add_u32 v{VAPHI1}, {LDS_PHI}, v{VT0}
    v_add_u32 v{VAPHI2}, {LDS_PHI + 24*56}, v{VT0}
    v_mov_b32 v{VT3}, {LDS_ZERO}
    v_cmp_lt_u32 vcc, 31, v1
    v_mov_b32 v{VNINF}, 0xff800000
    s_nop 0
    v_cndmask_b32 v{VAPHI2}, v{VAPHI2}, v{VT3}, vcc
    v_lshlrev_b32 v{VT0}, 2, v1
    v_add_u32 v{VT0}, {LDS_ZERO}, v{VT0}
    v_mov_b32 v{VT1}, 0
    s_mov_b32 exec_hi, 0
    ds_write_b32 v{VT0}, v{VT1}
    s_mov_b32 exec_hi, -1""")
    for r in range(ACC_K, ACC_K + 48):
        e(f"v_mov_b32 v{r}, 0")
    def reads(u, F):
        e(f"ds_read_b128 {vr(F,4)}, v{VAX0 if u == 0 else VAX1}")
        for idx, seg in enumerate((1, 2, 0)):
            w = F + 4 + 4 * idx
            e(f"ds_read_b64_tr_b16 {vr(w,2)}, v{VAW} offset:{u*3072 + seg*64}")
            e(f"ds_read_b64_tr_b16 {vr(w+2,2)}, v{VAW} offset:{u*3072 + seg*64 + 768}")
    def mfmas(F):
        for idx, acc in enumerate((ACC_K, ACC_V, ACC_Q)):
            w = F + 4 + 4 * idx
            e(f"v_mfma_f32_32x32x16_bf16 {vr(acc,16)}, {vr(w,4)}, {vr(F,4)}, {vr(acc,16)}")
    e("s_waitcnt lgkmcnt(0)")
    e("s_barrier")
    P.stamp()
    if o.profile: e("s_memtime s[60:61]")
    reads(0, FA)
    e(f"s_mov_b32 s{S_CNT}, 0")
    e(f"s_mov_b32 s{S_SL}, {(-3*SLOT) & 0xffffffff:#x}")
    lp = e.newlab("Lmain")
    e.label(lp)
    reads(1, FB)
    e(f"""s_add_u32 s{S_CNT}, s{S_CNT}, 1
    s_and_b32 s{S_T}, s{S_CNT}, 3
    s_cmp_eq_u32 s{S_T}, 0
    s_cselect_b32 s{S_T}, s{S_SL}, {SLOT}""")
    e("s_waitcnt lgkmcnt(7)")
    mfmas(FA)
    e(f"v_add_u32 v{VAX0}, s{S_T}, v{VAX0}")
    e("s_waitcnt lgkmcnt(0)")
    e(f"v_add_u32 v{VAX1}, s{S_T}, v{VAX1}")
    e(f"v_add_u32 v{VAW}, s{S_T}, v{VAW}")
    e("s_barrier")
    reads(0, FA)
    mfmas(FB)
    e(f"s_cmp_lt_u32 s{S_CNT}, 14")
    e(f"s_cbranch_scc1 {lp}")
    P.stamp()
    if o.profile: e("s_memtime s[62:63]")
    e(f"ds_read_b64_tr_b16 {vr(APHI,2)}, v{VAPHI1}")
    e(f"ds_read_b64_tr_b16 {vr(APHI+2,2)}, v{VAPHI1} offset:{8*56}")
    e(f"ds_read_b64_tr_b16 {vr(APHI+4,2)}, v{VAPHI1} offset:{16*56}")
    e(f"ds_read_b64_tr_b16 {vr(APHI+6,2)}, v{VAPHI2}")
    e("s_mov_b32 vcc_lo, 0")
    e("s_mov_b32 vcc_hi, -1")
    e("s_nop 7")
    e("s_waitcnt lgkmcnt(0)")

    PP, KB, EP = 64, 80, 104
    M, N, M2, N2, C, D = 88, 89, 90, 91, 92, 93
    TP, TP2, TN, TN2 = 94, 120, 122, 124
    SP, SN = 90, 92
    def feature(acc):
        EN = PP
        for i in range(8):
            e(f"v_cvt_pk_bf16_f32 v{KB+i}, v{acc+2*i}, v{acc+2*i+1}")
        e("s_nop 1")
        e(f"v_mfma_f32_32x32x16_bf16 {vr(PP,16)}, {vr(APHI,4)}, {vr(KB,4)}, 0")
        e(f"v_mfma_f32_32x32x16_bf16 {vr(PP,16)}, {vr(APHI+4,4)}, {vr(KB+4,4)}, {vr(PP,16)}")
        e("s_nop 11")
        p = lambda i: f"v{PP+i}"
        e(f"v_max3_f32 v{M}, {p(0)}, {p(1)}, {p(2)}")
        e(f"v_max3_f32 v{N}, -{p(0)}, -{p(1)}, -{p(2)}")
        e(f"v_max3_f32 v{M2}, {p(12)}, {p(13)}, {p(14)}")
        e(f"v_max3_f32 v{N2}, -{p(12)}, -{p(13)}, -{p(14)}")
        for a in (3, 5, 7, 9):
            e(f"v_max3_f32 v{M}, v{M}, {p(a)}, {p(a+1)}")
            e(f"v_max3_f32 v{N}, v{N}, -{p(a)}, -{p(a+1)}")
        e(f"v_max_f32 v{M2}, v{M2}, {p(15)}")
        e(f"v_max_f32_e64 v{N2}, v{N2}, -{p(15)}")
        e(f"v_cndmask_b32 v{M2}, v{M2}, v{VNINF}, vcc")
        e(f"v_cndmask_b32 v{N2}, v{N2}, v{VNINF}, vcc")
        e(f"v_max3_f32 v{M}, v{M}, {p(11)}, v{M2}")
        e(f"v_max3_f32 v{N}, v{N}, -{p(11)}, v{N2}")
        e("s_nop 1")
        e(f"v_permlane32_swap_b32 v{M}, v{N}")
        e("s_nop 0")
        e(f"v_max_f32 v{C}, v{M}, v{N}")
        e(f"v_mov_b32 v{D}, v{C}")
        e("s_nop 1")
        e(f"v_permlane32_swap_b32 v{C}, v{D}")
        e("s_nop 0")
        e(f"v_mul_f32 v{TP}, {NL2E:#x}, v{C}")
        e(f"v_mul_f32 v{TN}, {NL2E:#x}, v{D}")
        e(f"v_cndmask_b32 v{TP2}, v{TP}, v{VNINF}, vcc")
        e(f"v_cndmask_b32 v{TN2}, v{TN}, v{VNINF}, vcc")
        for i in range(8):
            tp = TP if i < 6 else TP2
            tn = TN if i < 6 else TN2
            e(f"v_pk_fma_f32 {vr(EP+2*i,2)}, {vr(PP+2*i,2)}, s[{S_L2E}:{S_L2E+1}], {vr(tp,2)} op_sel_hi:[1,1,0]")
            e(f"v_pk_fma_f32 {vr(EN+2*i,2)}, {vr(PP+2*i,2)}, s[{S_NL2E}:{S_NL2E+1}], {vr(tn,2)} op_sel_hi:[1,1,0]")
        for i in range(16):
            e(f"v_exp_f32 v{EP+i}, v{EP+i}")
            e(f"v_exp_f32 v{EN+i}, v{EN+i}")
        e(f"v_pk_add_f32 {vr(SP,2)}, {vr(EP,2)}, {vr(EP+2,2)}")
        e(f"v_pk_add_f32 {vr(SN,2)}, {vr(EN,2)}, {vr(EN+2,2)}")
        for i in range(2, 8):
            e(f"v_pk_add_f32 {vr(SP,2)}, {vr(SP,2)}, {vr(EP+2*i,2)}")
            e(f"v_pk_add_f32 {vr(SN,2)}, {vr(SN,2)}, {vr(EN+2*i,2)}")
        e(f"v_add_f32 v{M}, v{SP}, v{SP+1}")
        e(f"v_add_f32 v{N}, v{SN}, v{SN+1}")
        e("s_nop 1")
        e(f"v_permlane32_swap_b32 v{M}, v{N}")
        e("s_nop 0")
        e(f"v_add_f32 v{M2}, v{M}, v{N}")
        e(f"v_rcp_f32 v{TP}, v{M2}")
        e("s_nop 0")
        e(f"v_mov_b32 v{TN}, v{TP}")
        e("s_nop 1")
        e(f"v_permlane32_swap_b32 v{TP}, v{TN}")
        e("s_nop 0")
        for i in range(8):
            e(f"v_pk_mul_f32 {vr(EP+2*i,2)}, {vr(EP+2*i,2)}, {vr(TP,2)} op_sel_hi:[1,0]")
            e(f"v_pk_mul_f32 {vr(EN+2*i,2)}, {vr(EN+2*i,2)}, {vr(TN,2)} op_sel_hi:[1,0]")
        for i in range(8):
            e(f"v_cvt_pk_bf16_f32 v{acc+i}, v{EP+2*i}, v{EP+2*i+1}")
            e(f"v_cvt_pk_bf16_f32 v{acc+8+i}, v{EN+2*i}, v{EN+2*i+1}")
    feature(ACC_K)
    e(f"v_mov_b32 v{M}, 1.0")
    e(f"v_mov_b32 v{N}, 0")
    e(f"v_cndmask_b32 v{ACC_V+12}, v{ACC_V+12}, v{M}, vcc")
    for r in (13, 14, 15):
        e(f"v_cndmask_b32 v{ACC_V+r}, v{ACC_V+r}, v{N}, vcc")
    for i in range(8):
        e(f"v_cvt_pk_bf16_f32 v{ACC_V+i}, v{ACC_V+2*i}, v{ACC_V+2*i+1}")
    for a in range(4):
        e(f"ds_write_b64 v{VAIMG}, {vr(ACC_K+2*a,2)} offset:{IMG_P + 16*a}")
        e(f"ds_write_b64 v{VAIMG}, {vr(ACC_K+8+2*a,2)} offset:{IMG_N + 16*a}")
        e(f"ds_write_b64 v{VAIMG}, {vr(ACC_V+2*a,2)} offset:{IMG_V + 16*a}")
    e("s_waitcnt lgkmcnt(0)")
    e("s_barrier")
    P.stamp()
    lab_nokv = e.newlab("Lnokv")
    e(f"s_cmp_ge_u32 s{S_WAVE}, 2")
    e(f"s_cbranch_scc1 {lab_nokv}")
    KVD = 104
    e(f"s_mul_i32 s{S_T}, s{S_WAVE}, {IMG_SZ}")
    e(f"v_add_u32 v{VT0}, s{S_T}, v{VATR}")
    FR = 64
    def kvreads(u, a):
        e(f"ds_read_b64_tr_b16 {vr(a,2)}, v{VT0} offset:{IMG_P + 1152*u}")
        e(f"ds_read_b64_tr_b16 {vr(a+2,2)}, v{VT0} offset:{IMG_P + 1152*u + 288}")
        e(f"ds_read_b64_tr_b16 {vr(a+4,2)}, v{VATR} offset:{IMG_V + 1152*u}")
        e(f"ds_read_b64_tr_b16 {vr(a+6,2)}, v{VATR} offset:{IMG_V + 1152*u + 288}")
    for u in range(3): kvreads(u, FR + 8 * u)
    for u in range(8):
        if u + 3 < 8:
            kvreads(u + 3, FR + 8 * ((u + 3) % 4))
            e("s_waitcnt lgkmcnt(12)")
        else:
            e(f"s_waitcnt lgkmcnt({(7-u)*4})")
        a = FR + 8 * (u % 4)
        c_in = "0" if u == 0 else vr(KVD, 16)
        e(f"v_mfma_f32_32x32x16_bf16 {vr(KVD,16)}, {vr(a,4)}, {vr(a+4,4)}, {c_in}")
    e(f"""s_lshl_b32 s{S_T}, s{S_H}, 4
    s_add_u32 s{S_T}, s{S_T}, s{S_RB}
    s_lshl_b32 s{S_T}, s{S_T}, 12
    s_lshl_b32 s{S_T2}, s{S_WAVE}, 11
    s_add_u32 s{S_T}, s{S_T}, s{S_T2}
    s_add_u32 s{S_T}, s{S_T}, {OFF_PART}
    v_lshlrev_b32 v{VT1}, 4, v1
    s_nop 4""")
    for i in range(8):
        e(f"v_cvt_pk_bf16_f32 v{FR+i}, v{KVD+2*i}, v{KVD+2*i+1}")
    e(f"""buffer_store_dwordx4 {vr(FR,4)}, v{VT1}, {rs(R_WS)}, s{S_T} offen sc1
    buffer_store_dwordx4 {vr(FR+4,4)}, v{VT1}, {rs(R_WS)}, s{S_T} offen offset:1024 sc1
    s_nop 1""")
    e.label(lab_nokv)
    P.stamp()
    feature(ACC_Q)
    e("s_barrier")
    PR = 64
    SL = 16
    h1 = e.newlab("Lh1"); h1d = e.newlab("Lh1d")
    e(f"""s_lshl_b32 s{S_T3}, s{S_H}, 16
    s_lshl_b32 s{S_T2}, s{S_WAVE}, 10
    s_add_u32 s{S_T3}, s{S_T3}, s{S_T2}
    s_add_u32 s{S_T3}, s{S_T3}, {OFF_PART}
    v_lshlrev_b32 v{VT1}, 4, v1
    s_mov_b32 s{S_CNT}, 0
    s_mov_b32 s{S_XOFF}, 0x00003f80
    s_mov_b32 s{S_WOFF}, 0x3f800000""")
    e.label(h1)
    e(f"s_mov_b32 s{S_T}, s{S_T3}")
    for p_ in range(16):
        e(f"buffer_load_dwordx4 {vr(PR+4*p_,4)}, v{VT1}, {rs(R_WS)}, s{S_T} offen sc1")
        if p_ < 15:
            e(f"s_add_u32 s{S_T}, s{S_T}, 4096")
    for j in range(8):
        e(f"v_mov_b32 v{SL+j}, 0")
    for p_ in range(16):
        e(f"s_waitcnt vmcnt({15-p_})")
        for j in range(4):
            e(f"v_dot2_f32_bf16 v{SL+2*j}, v{PR+4*p_+j}, s{S_XOFF}, v{SL+2*j}")
            e(f"v_dot2_f32_bf16 v{SL+2*j+1}, v{PR+4*p_+j}, s{S_WOFF}, v{SL+2*j+1}")
    e("s_nop 2")
    e(f"""v_pk_add_f32 {vr(24,2)}, {vr(SL,2)}, {vr(SL+2,2)}
    v_pk_add_f32 {vr(26,2)}, {vr(SL+4,2)}, {vr(SL+6,2)}
    v_pk_add_f32 {vr(24,2)}, {vr(24,2)}, {vr(26,2)}
    v_add_f32 v24, v24, v25
    s_add_u32 s{S_CNT}, s{S_CNT}, 1
    v_cmp_u_f32 vcc, v24, v24
    s_cmp_gt_u32 s{S_CNT}, {o.spin_limit // 8}
    s_cbranch_scc1 {h1d}
    s_cbranch_vccnz {h1}""")
    e.label(h1d)
    for j in range(4):
        e(f"v_cvt_pk_bf16_f32 v{24+j}, v{SL+2*j}, v{SL+2*j+1}")
    e(f"""s_lshl_b32 s{S_T}, s{S_WAVE}, 10
    s_add_u32 s{S_T}, s{S_T}, {LDS_KVX}
    v_add_u32 v{VT2}, s{S_T}, v{VT1}
    v_add_u32 v{VT3}, {LDS_KVX}, v{VT1}
    ds_write_b128 v{VT2}, {vr(24,4)}
    s_waitcnt lgkmcnt(0)
    s_barrier""")
    P.stamp()
    KVF, ND = 64, 80
    for t in range(4):
        e(f"ds_read_b128 {vr(KVF+4*t,4)}, v{VT3} offset:{1024*t}")
    e(f"""v_and_b32 v{VT0}, 31, v1
    v_lshrrev_b32 v{VT2}, 4, v{VT0}
    v_lshlrev_b32 v{VT2}, 14, v{VT2}
    v_and_b32 v{VT0}, 15, v{VT0}
    v_lshlrev_b32 v{VT0}, 4, v{VT0}
    v_lshrrev_b32 v{VT3}, 5, v1
    v_lshlrev_b32 v{VT3}, 9, v{VT3}
    v_add3_u32 v{VT0}, v{VT0}, v{VT2}, v{VT3}
    s_lshl_b32 s{S_T}, s{S_RB}, 3
    s_lshl_b32 s{S_T2}, s{S_WAVE}, 1
    s_add_u32 s{S_T}, s{S_T}, s{S_T2}
    s_lshl_b32 s{S_T}, s{S_T}, 4
    s_add_u32 s{S_T}, s{S_T}, s{S_H}
    s_lshl_b32 s{S_T}, s{S_T}, 10
    s_add_u32 s{S_T}, s{S_T}, {OFF_OBUF}""")
    for t in range(4):
        e(f"s_waitcnt lgkmcnt({3-t})")
        c_in = "0" if t == 0 else vr(ND, 16)
        e(f"v_mfma_f32_32x32x16_bf16 {vr(ND,16)}, {vr(KVF+4*t,4)}, {vr(ACC_Q+4*t,4)}, {c_in}")
    e("s_nop 11")
    e(f"""v_mov_b32 v96, v{ND+12}
    v_mov_b32 v98, v{ND+12}
    s_nop 1
    v_permlane32_swap_b32 v96, v98
    s_nop 0
    v_add_f32 v98, 0x358637bd, v98
    v_rcp_f32 v98, v98
    s_nop 0""")
    for i in range(8):
        e(f"v_pk_mul_f32 {vr(ND+2*i,2)}, {vr(ND+2*i,2)}, {vr(98,2)} op_sel_hi:[1,0]")
    for i in range(8):
        e(f"v_cvt_pk_bf16_f32 v{100+i}, v{ND+2*i}, v{ND+2*i+1}")
    e(f"""buffer_store_dwordx4 {vr(100,4)}, v{VT0}, {rs(R_WS)}, s{S_T} offen sc1
    buffer_store_dwordx4 {vr(104,4)}, v{VT0}, {rs(R_WS)}, s{S_T} offen offset:256 sc1""")
    P.stamp()
    lab_skip_final = e.newlab("Lnofinal")
    e(f"s_cmp_eq_u32 s{S_CB}, 7")
    e(f"s_cbranch_scc1 {lab_skip_final}")
    OF, WF, ACC, VA = 64, 16, 48, 2
    e(f"""s_lshl_b32 s{S_T3}, s{S_TB}, 2
    s_add_u32 s{S_T3}, s{S_T3}, s{S_WAVE}
    s_lshl_b32 s{S_T3}, s{S_T3}, 14
    s_add_u32 s{S_T3}, s{S_T3}, {OFF_OBUF}
    v_and_b32 v{VT0}, 15, v1
    v_lshlrev_b32 v{VT0}, 10, v{VT0}""")
    e(f"""v_lshrrev_b32 v6, 4, v1          ; g'
    v_and_b32 v7, 1, v6           ; t
    v_lshrrev_b32 v6, 1, v6       ; hi
    v_lshrrev_b32 v8, 2, v1
    v_and_b32 v8, 3, v8           ; r
    v_lshlrev_b32 v9, 4, v7       ; 16t
    v_lshl_add_u32 v9, v6, 2, v9   ; 16t + 4hi
    v_add_u32 v9, v9, v8      ; d
    v_lshlrev_b32 v9, 7, v9       ; d*128
    v_and_b32 v6, 3, v1
    v_lshl_add_u32 v9, v6, 3, v9   ; + c*8
    v_lshrrev_b32 v8, 1, v8
    v_lshl_add_u32 v8, v7, 1, v8   ; f""")
    for ct in range(4):
        e(f"v_xor_b32 v6, {ct}, v8")
        e(f"v_lshl_add_u32 v{VA+ct}, v6, 5, v9")
    poll_not_poison(e, o, VT0, S_T3, VT2)
    P.stamp()
    e(f"s_mov_b32 s{S_CNT}, 0")
    h2 = e.newlab("Lh2"); h2d = e.newlab("Lh2d")
    e.label(h2)
    e(f"s_mov_b32 s{S_T}, s{S_T3}")
    for hh in range(16):
        if hh % 4 == 0 and hh:
            e(f"s_add_u32 s{S_T}, s{S_T}, 4096")
        e(f"buffer_load_dwordx4 {vr(OF+4*hh,4)}, v{VT1}, {rs(R_WS)}, s{S_T} offen offset:{(hh%4)*1024} sc1")
    first = e.newlab("Lh2w")
    e(f"s_cmp_lg_u32 s{S_CNT}, 0")
    e(f"s_cbranch_scc1 {first}")
    e("s_barrier")
    e.label(first)
    def wreads(hh, s):
        for ct in range(4):
            w = WF + 16 * s + 4 * ct
            e(f"ds_read_b64_tr_b16 {vr(w,2)}, v{VA+ct} offset:{hh*4096}")
            e(f"ds_read_b64_tr_b16 {vr(w+2,2)}, v{VA+ct} offset:{hh*4096 + 1024}")
    wreads(0, 0)
    for hh in range(16):
        if hh + 1 < 16:
            wreads(hh + 1, (hh + 1) % 2)
            e(f"s_waitcnt vmcnt({15-hh}) lgkmcnt(8)")
        else:
            e(f"s_waitcnt vmcnt(0) lgkmcnt(0)")
        for ct in range(4):
            w = WF + 16 * (hh % 2) + 4 * ct
            c_in = "0" if hh == 0 else vr(ACC + 4 * ct, 4)
            e(f"v_mfma_f32_16x16x32_bf16 {vr(ACC+4*ct,4)}, {vr(w,4)}, {vr(OF+4*hh,4)}, {c_in}")
    e("s_nop 7")
    e(f"""v_add_f32 v6, v{ACC}, v{ACC+4}
    v_add_f32 v7, v{ACC+8}, v{ACC+12}
    v_add_f32 v6, v6, v7
    s_add_u32 s{S_CNT}, s{S_CNT}, 1
    v_cmp_u_f32 vcc, v6, v6
    s_cmp_gt_u32 s{S_CNT}, {o.spin_limit // 8}
    s_cbranch_scc1 {h2d}
    s_cbranch_vccnz {h2}""")
    e.label(h2d)
    P.stamp()
    srd(e, R_OUT, S_OUT, 2048 * 1792)
    X0 = 16
    for pr in range(2):
        X = X0 + 4 * pr
        e(f"v_cvt_pk_bf16_f32 v{X}, v{ACC+8*pr}, v{ACC+8*pr+1}")
        e(f"v_cvt_pk_bf16_f32 v{X+1}, v{ACC+8*pr+2}, v{ACC+8*pr+3}")
        e(f"v_cvt_pk_bf16_f32 v{X+2}, v{ACC+8*pr+4}, v{ACC+8*pr+5}")
        e(f"v_cvt_pk_bf16_f32 v{X+3}, v{ACC+8*pr+6}, v{ACC+8*pr+7}")
    e(f"""v_and_b32 v{VT0}, 15, v1
    s_lshl_b32 s{S_T}, s{S_TB}, 6
    s_lshl_b32 s{S_T2}, s{S_WAVE}, 4
    s_add_u32 s{S_T}, s{S_T}, s{S_T2}
    v_add_u32 v{VT0}, s{S_T}, v{VT0}
    v_mul_u32_u24 v{VT0}, 1792, v{VT0}
    v_lshrrev_b32 v{VT2}, 4, v1""")
    for pr in range(2):
        X = X0 + 4 * pr
        e(f"v_permlane16_swap_b32 v{X}, v{X+2}")
        e(f"v_permlane16_swap_b32 v{X+1}, v{X+3}")
    e(f"""v_and_b32 v{VT3}, 1, v{VT2}
    v_lshlrev_b32 v{VT3}, 5, v{VT3}
    v_lshrrev_b32 v{VT2}, 1, v{VT2}
    v_lshlrev_b32 v{VT2}, 4, v{VT2}
    v_add3_u32 v{VT0}, v{VT0}, v{VT2}, v{VT3}
    s_lshl_b32 s{S_T}, s{S_CB}, 7
    s_add_u32 s{S_T}, s{S_T}, 896
    buffer_store_dwordx4 {vr(X0,4)}, v{VT0}, {rs(R_OUT)}, s{S_T} offen
    buffer_store_dwordx4 {vr(X0+4,4)}, v{VT0}, {rs(R_OUT)}, s{S_T} offen offset:64""")
    e.label(lab_skip_final)
    lab3 = e.newlab("Lnoep")
    e(f"""s_or_b32 s{S_T}, s2, s{S_WAVE}
    s_cmp_lg_u32 s{S_T}, 0
    s_cbranch_scc1 {lab3}
    s_load_dword s{S_EP}, s[{S_WS}:{S_WS+1}], 0
    s_waitcnt lgkmcnt(0)""")
    calc_tag(e)
    if o.do_a and o.a_level == 3:
        for i in range(4):
            e(f"""v_add_u32 v30, {64*i}, v1
            v_min_u32 v30, 223, v30
            v_lshlrev_b32 v30, {o.fsh}, v30
            v_add_u32 v30, {OFF_YF}, v30""")
            poll_eq_tag(e, o, 30, 31, sleep=8)
    e(f"""v_mov_b32 v30, 0
    v_mov_b32 v31, s{S_TAG}
    s_mov_b64 exec, 1
    buffer_store_dword v31, v30, {rs(R_WS)}, 0 offen sc1
    s_mov_b64 exec, -1""")
    e.label(lab3)
    if o.profile:
        lab4 = e.newlab("Lnoprof")
        e("s_waitcnt vmcnt(0)")
        P.stamp()
        e(f"s_cmp_lg_u32 s{S_WAVE}, 0")
        e(f"s_cbranch_scc1 {lab4}")
        e("s_waitcnt lgkmcnt(0)")
        e("s_sub_u32 s98, s62, s60")
        P.n = 10
        P.flush(32, S_T)
        e.label(lab4)
    e("s_endpgm")
    e.label("Lb_loader")
    gen_b_loader(e, o)

def gen_a_helper_clears(e, o, P):
    VT0, VT1 = 10, 11
    e(f"""v_lshlrev_b32 v{VT0}, 4, v1
    v_mov_b32 v16, -1
    v_mov_b32 v17, -1
    v_mov_b32 v18, -1
    v_mov_b32 v19, -1
    s_lshl_b32 s{S_T}, s{S_H}, 4
    s_add_u32 s{S_T}, s{S_T}, s{S_RB}
    s_lshl_b32 s{S_T2}, s{S_T}, 12
    s_add_u32 s{S_T2}, s{S_T2}, {OFF_PART}""")
    for i in range(4):
        e(f"buffer_store_dwordx4 {vr(16,4)}, v{VT0}, {rs(R_WS)}, s{S_T2} offen offset:{1024*i} sc1")
    e(f"""s_lshl_b32 s{S_T2}, s{S_RB}, 7
    s_add_u32 s{S_T2}, s{S_T2}, s{S_H}
    s_lshl_b32 s{S_T2}, s{S_T2}, 10
    s_add_u32 s{S_T2}, s{S_T2}, {OFF_OBUF}""")
    for i in range(8):
        e(f"buffer_store_dwordx4 {vr(16,4)}, v{VT0}, {rs(R_WS)}, s{S_T2} offen sc1")
        if i < 7: e(f"s_add_u32 s{S_T2}, s{S_T2}, 16384")
    e("s_waitcnt vmcnt(0) lgkmcnt(0)")
    calc_tag(e)
    e(f"""s_lshl_b32 s{S_T}, s{S_T}, 2
    s_add_u32 s{S_T}, s{S_T}, {OFF_CF}
    v_mov_b32 v{VT0}, s{S_T}
    v_mov_b32 v{VT1}, s{S_TAG}
    s_mov_b64 exec, 1
    buffer_store_dword v{VT1}, v{VT0}, {rs(R_WS)}, 0 offen sc1
    s_mov_b64 exec, -1""")

A_PARAM, A_KTAB, A_KREV, A_UC = 0, 16384, 22528, 31744
A_YIMG = 0
KT_SZ, KR_SZ, UC_CP, UC_CH = 3072, 4608, 4288, 17152
S_CG, S_J, S_C0, S_PAIR = 64, 65, 66, 67

def bf16r_np(x):
    u = np.float32(x).view(np.uint32)
    return (((u + 0x7FFF + ((u >> 16) & 1)) >> 16) << 16).astype(np.uint32).view(np.float32)
HI_TAB = [0,1,2,3,4,5,6,7,512,516,1024,1536,2048,0,0,0]
def kpos(l):
    return l if l < 128 else int(np.float32(l).view(np.uint32) >> 16) - 17024
def tables():
    scat = np.zeros((64, 16), np.uint16)
    for lane in range(64):
        c, g = lane & 15, lane >> 4
        for i in range(2):
            for j in range(2):
                for r in range(4):
                    m = 4 * g + r
                    l = HI_TAB[m] + 256 * i + 128 * j + 8 * c
                    ok = m < 13 and l <= 2048 and float(bf16r_np(l)) == l
                    scat[lane, (i * 2 + j) * 4 + r] = 4 * (kpos(l) if ok else 704 + lane)
    ex = np.zeros((2, 64, 8, 2), np.uint16)
    for mh in range(2):
        for lane in range(64):
            for i in range(8):
                for b in range(2):
                    x = 1024 * mh + 128 * i + 2 * lane + b
                    ex[mh, lane, i, b] = 4 * kpos(int(bf16r_np(2047 - x)))
    ex = ex.reshape(-1)
    la = np.array([HI_TAB[l & 15] for l in range(64)], np.float32)
    return scat, ex, la

def emit_tables(e):
    scat, ex, la = tables()
    e.lines.append(".p2align 6")
    e.label("Ltab_la")
    for v in la.view(np.uint32): e(f".long {int(v):#x}")
    e.label("Ltab_scat")
    for v in scat.reshape(-1).view(np.uint32): e(f".long {int(v):#x}")
    e.label("Ltab_exp")
    for v in ex.view(np.uint32): e(f".long {int(v):#x}")

def transpose64(e, load_fn, store_fn, lds):
    TR1, TR2 = lds, lds + 9216
    VA1, VA2, VA3 = 4, 5, 6
    L, R = 16, 48
    for i in range(8): load_fn(i, L + 4 * i)
    e(f"""v_lshrrev_b32 v7, 3, v1
    v_mul_u32_u24 v7, 144, v7
    v_and_b32 v8, 7, v1
    v_lshl_add_u32 v7, v8, 4, v7
    v_add_u32 v{VA1}, {TR1}, v7
    v_lshrrev_b32 v7, 4, v1
    v_lshrrev_b32 v8, 2, v1
    v_and_b32 v8, 3, v8
    v_lshl_add_u32 v8, v7, 3, v8
    v_mul_u32_u24 v8, 144, v8
    v_and_b32 v9, 3, v1
    v_lshl_add_u32 v8, v9, 3, v8
    v_add_u32 v{VA2}, {TR1}, v8
    v_and_b32 v8, 15, v1
    v_mul_u32_u24 v8, 144, v8
    v_lshl_add_u32 v8, v7, 4, v8
    v_add_u32 v{VA3}, {TR2}, v8""")
    for i in range(8):
        e(f"s_waitcnt vmcnt({7-i})")
        e(f"ds_write_b128 v{VA1}, {vr(L+4*i,4)} offset:{8*144*i}")
    e("s_waitcnt lgkmcnt(0)")
    for cj in range(4):
        for pp in range(2):
            r = R + 4 * (cj * 2 + pp)
            e(f"ds_read_b64_tr_b16 {vr(r,2)}, v{VA2} offset:{32*144*pp + cj*32}")
            e(f"ds_read_b64_tr_b16 {vr(r+2,2)}, v{VA2} offset:{32*144*pp + cj*32 + 4*144}")
    e("s_waitcnt lgkmcnt(0)")
    for cj in range(4):
        for pp in range(2):
            r = R + 4 * (cj * 2 + pp)
            e(f"ds_write_b128 v{VA3}, {vr(r,4)} offset:{16*144*cj + 64*pp}")
    e("s_waitcnt lgkmcnt(0)")
    e(f"v_add_u32 v{VA1}, 9216, v{VA1}")
    for i in range(8):
        e(f"ds_read_b128 {vr(L+4*i,4)}, v{VA1} offset:{8*144*i}")
    for i in range(8):
        e(f"s_waitcnt lgkmcnt({7-i})")
        store_fn(i, L + 4 * i)

def store_flag(e, soff_reg, va, vb):
    e(f"""v_mov_b32 v{va}, s{soff_reg}
    v_mov_b32 v{vb}, s{S_TAG}
    s_mov_b64 exec, 1
    buffer_store_dword v{vb}, v{va}, {rs(R_WS)}, 0 offen sc1
    s_mov_b64 exec, -1""")

def gen_a(e, o):
    e.c("A role")
    e(f"s_sub_u32 s{S_SL}, s2, 256")
    e(f"s_cmp_eq_u32 s{S_WAVE}, 4")
    e("s_cbranch_scc1 Lexit")
    e(f"""s_and_b32 s{S_CG}, s{S_SL}, 7
    s_lshr_b32 s{S_J}, s{S_SL}, 3
    s_cmp_eq_u32 s{S_CG}, 7
    s_cbranch_scc1 Lexit
    s_lshl_b32 s{S_PAIR}, s{S_CG}, 5
    s_add_u32 s{S_PAIR}, s{S_PAIR}, s{S_J}
    s_lshl_b32 s{S_C0}, s{S_PAIR}, 1""")
    if o.a_level == 0:
        e("s_endpgm")
    e(f"s_cmp_eq_u32 s{S_WAVE}, 5")
    e("s_cbranch_scc1 La_h2")
    if o.a_level == 1:
        e("s_endpgm")
    P = Prof(e, o, 0)
    S_CH, S_MH, S_DT, S_DV = 68, 69, 60, 61
    S_TB_ = 76
    VT0, VT1, VT2, VT3 = 2, 3, 4, 5
    VLA, VLB, VPA = 6, 8, 10
    e(f"""s_lshr_b32 s{S_CH}, s{S_WAVE}, 1
    s_and_b32 s{S_MH}, s{S_WAVE}, 1
    s_add_u32 s{S_T}, s{S_C0}, s{S_CH}
    s_lshl_b32 s{S_T}, s{S_T}, 9
    s_lshl_b32 s{S_T2}, s{S_MH}, 8
    s_add_u32 s{S_T}, s{S_T}, s{S_T2}
    v_lshlrev_b32 v{VT0}, 2, v1
    v_add_u32 v{VT0}, s{S_T}, v{VT0}
    s_getpc_b64 s[76:77]""")
    e.label("La_pc")
    e(f"""s_add_u32 s76, s76, Ltab_la-La_pc
    s_addc_u32 s77, s77, 0
    v_lshlrev_b32 v{VT1}, 2, v1
    s_lshl_b32 s{S_T2}, s{S_C0}, 1
    s_mov_b32 s{S_L2E}, {L2E:#x}
    s_waitcnt lgkmcnt(0)""")
    srd(e, R_WS, S_WS, WS_BYTES)
    IN = 16
    for k, base in enumerate((S_ARE, S_AIM, S_BRE, S_BIM, S_CRE, S_CIM)):
        r = (R_X, R_W)[k % 2]
        srd(e, r, base, 448 * 512)
        e(f"buffer_load_dword v{IN+2*k}, v{VT0}, {rs(r)}, 0 offen")
    srd(e, R_WO, 76, 6400)
    e(f"buffer_load_dword v{VLA}, v{VT1}, {rs(R_WO)}, 0 offen")
    e(f"s_add_u32 s62, s{S_LDT}, s{S_T2}")
    e(f"s_addc_u32 s63, s{S_LDT+1}, 0")
    e(f"s_load_dword s{S_DT}, s[62:63], 0")
    e(f"s_add_u32 s6, s{S_DSK}, s{S_T2}")
    e(f"s_addc_u32 s7, s{S_DSK+1}, 0")
    e(f"s_load_dword s{S_DV}, s[6:7], 0")
    e(f"s_load_dword s{S_EP}, s[{S_WS}:{S_WS+1}], 0")
    P.stamp()
    e(f"""v_mov_b32 v32, 0
    v_mov_b32 v33, 0
    v_mov_b32 v34, 0
    v_mov_b32 v35, 0
    v_lshlrev_b32 v{VT2}, 4, v1
    s_mul_i32 s{S_T}, s{S_CH}, {KR_SZ}
    s_add_u32 s{S_T}, s{S_T}, {A_KREV + 4096}
    v_add_u32 v{VT3}, s{S_T}, v{VT2}
    s_mov_b32 exec_hi, 0
    ds_write_b128 v{VT3}, v[32:35]
    s_mov_b32 exec_hi, -1
    v_and_b32 v{VT2}, 15, v1
    v_lshlrev_b32 v{VT2}, 3, v{VT2}
    v_cvt_f32_u32 v{VLB}, v{VT2}
    v_lshrrev_b32 v{VT2}, 4, v1
    v_lshlrev_b32 v{VT2}, 7, v{VT2}
    s_lshl_b32 s{S_T}, s{S_WAVE}, 12
    v_add_u32 v{VPA}, s{S_T}, v{VT2}
    s_waitcnt lgkmcnt(0)""")
    DT = 32
    e(f"""s_lshl_b32 s{S_T}, s{S_CH}, 4
    s_lshr_b32 s{S_DT}, s{S_DT}, s{S_T}
    s_lshl_b32 s{S_DT}, s{S_DT}, 16
    s_lshr_b32 s{S_DV}, s{S_DV}, s{S_T}
    s_lshl_b32 s{S_DV}, s{S_DV}, 16
    v_mov_b32 v33, s{S_DT}
    v_mul_f32 v34, s{S_L2E}, v33
    v_fma_f32 v35, v33, s{S_L2E}, -v34
    v_mov_b32 v36, 0x32a57060
    v_fmac_f32 v35, v33, v36
    v_exp_f32 v34, v34
    v_mul_f32 v35, 0x3f317218, v35
    s_nop 0
    v_fma_f32 v34, v34, v35, v34
    v_cvt_pk_bf16_f32 v34, v34, v34
    v_and_b32 v{DT}, 0xffff0000, v34""")
    e("s_waitcnt vmcnt(0)")
    for k in range(6):
        e(f"v_and_b32 v{IN+2*k+1}, 0xffff0000, v{IN+2*k}")
        e(f"v_lshlrev_b32 v{IN+2*k}, 16, v{IN+2*k}")
    ARE, AIM, BRE, BIM, CRE, CIM = [IN + 2 * k for k in range(6)]
    for m in range(2):
        PP0 = 40 + 8 * m
        t0, t1, t2, t3 = 56, 57, 58, 59
        e(f"""v_mul_f32 v{t0}, v{DT}, v{ARE+m}
        v_mul_f32 v{PP0}, s{S_L2E}, v{t0}
        v_mul_f32 v{t0}, v{DT}, v{AIM+m}
        v_mul_f32 v{PP0+1}, 0.15915494, v{t0}
        v_mul_f32 v{t0}, v{DT}, v{BRE+m}
        v_mul_f32 v{t1}, v{DT}, v{BIM+m}
        v_mul_f32 v{t2}, v{CIM+m}, v{t1}
        v_fma_f32 v{PP0+2}, v{CRE+m}, v{t0}, -v{t2}
        v_mul_f32 v{t2}, v{CIM+m}, v{t0}
        v_fma_f32 v{PP0+3}, v{CRE+m}, v{t1}, v{t2}
        v_mul_f32 v{t0}, 0x43000000, v{PP0}
        v_mul_f32 v{t1}, 0x43000000, v{PP0+1}
        v_fract_f32 v{t1}, v{t1}
        v_exp_f32 v{t0}, v{t0}
        v_cos_f32 v{t2}, v{t1}
        v_sin_f32 v{t3}, v{t1}
        s_nop 0
        v_mul_f32 v{PP0+4}, v{t0}, v{t2}
        v_mul_f32 v{PP0+5}, v{t0}, v{t3}
        v_mul_f32 v{t0}, v{PP0+5}, v{PP0+5}
        v_fma_f32 v{PP0+6}, v{PP0+4}, v{PP0+4}, -v{t0}
        v_mul_f32 v{t0}, v{PP0+4}, v{PP0+5}
        v_add_f32 v{PP0+7}, v{t0}, v{t0}""")
    e(f"""v_lshlrev_b32 v{VT2}, 6, v1
    s_lshl_b32 s{S_T}, s{S_WAVE}, 12
    v_add_u32 v{VT2}, s{S_T}, v{VT2}
    ds_write_b128 v{VT2}, v[40:43]
    ds_write_b128 v{VT2}, v[44:47] offset:16
    ds_write_b128 v{VT2}, v[48:51] offset:32
    ds_write_b128 v{VT2}, v[52:55] offset:48
    s_waitcnt lgkmcnt(0)""")
    P.stamp()
    PA, QA = 16, 32
    TA, TB, CA, CB = 48, 56, 64, 72
    OA0, OA1, OB0, OB1 = 80, 84, 88, 92
    ACC = 96
    for r in range(ACC, ACC + 16):
        e(f"v_mov_b32 v{r}, 0")
    e(f"s_mov_b32 s{S_CNT}, 0")
    lp = e.newlab("Lkg")
    def preads():
        for j in range(4):
            e(f"ds_read_b128 {vr(PA+4*j,4)}, v{VPA} offset:{32*j}")
        for j in range(4):
            e(f"ds_read_b128 {vr(QA+4*j,4)}, v{VPA} offset:{32*j+16}")
    if o.profile:
        e("s_memtime s[96:97]")
        e("s_waitcnt lgkmcnt(0)")
    preads()
    e.label(lp)
    e("s_waitcnt lgkmcnt(4)")
    for j in range(4):
        e(f"v_pk_mul_f32 {vr(TA+2*j,2)}, {vr(PA+4*j,2)}, {vr(VLA,2)} op_sel_hi:[1,0]")
        e(f"v_pk_mul_f32 {vr(TB+2*j,2)}, {vr(PA+4*j,2)}, {vr(VLB,2)} op_sel_hi:[1,0]")
    for j in range(4):
        e(f"v_fract_f32 v{TA+2*j+1}, v{TA+2*j+1}")
        e(f"v_fract_f32 v{TB+2*j+1}, v{TB+2*j+1}")
    for j in range(4):
        e(f"v_exp_f32 v{TA+2*j}, v{TA+2*j}")
        e(f"v_cos_f32 v{CA+2*j}, v{TA+2*j+1}")
        e(f"v_sin_f32 v{CA+2*j+1}, v{TA+2*j+1}")
        e(f"v_exp_f32 v{TB+2*j}, v{TB+2*j}")
        e(f"v_cos_f32 v{CB+2*j}, v{TB+2*j+1}")
        e(f"v_sin_f32 v{CB+2*j+1}, v{TB+2*j+1}")
    e("s_waitcnt lgkmcnt(0)")
    for j in range(4):
        e(f"v_pk_mul_f32 {vr(CA+2*j,2)}, {vr(CA+2*j,2)}, {vr(TA+2*j,2)} op_sel_hi:[1,0]")
        e(f"v_pk_mul_f32 {vr(CB+2*j,2)}, {vr(CB+2*j,2)}, {vr(TB+2*j,2)} op_sel_hi:[1,0]")
    def cmul(d, t, a, b):
        return (f"v_pk_mul_f32 {vr(t,2)}, {vr(a,2)}, {vr(b,2)} op_sel_hi:[1,0]",
                f"v_pk_fma_f32 {vr(d,2)}, {vr(a,2)}, {vr(b,2)}, {vr(t,2)} op_sel:[1,1,0] op_sel_hi:[0,1,1] neg_lo:[0,1,0]")
    for j in range(4):
        e(cmul(TA+2*j, TA+2*j, CA+2*j, PA+4*j+2)[0])
        e(cmul(TB+2*j, TB+2*j, CB+2*j, QA+4*j)[0])
    for j in range(4):
        e(cmul(TA+2*j, TA+2*j, CA+2*j, PA+4*j+2)[1])
        e(cmul(TB+2*j, TB+2*j, CB+2*j, QA+4*j)[1])
    for j in range(4):
        e(f"v_cvt_pk_bf16_f32 v{OB0+j}, v{CB+2*j}, v{CB+2*j+1}")
        e(cmul(CA+2*j, CA+2*j, TA+2*j, QA+4*j+2)[0])
    for j in range(4):
        e(f"v_cvt_pk_bf16_f32 v{OA0+j}, v{TA+2*j}, -v{TA+2*j+1}")
        e(cmul(CA+2*j, CA+2*j, TA+2*j, QA+4*j+2)[1])
    e(f"v_add_u32 v{VPA}, 512, v{VPA}")
    for j in range(4):
        e(f"v_cvt_pk_bf16_f32 v{OB1+j}, v{TB+2*j}, v{TB+2*j+1}")
    preads()
    for j in range(4):
        e(f"v_cvt_pk_bf16_f32 v{OA1+j}, v{CA+2*j}, -v{CA+2*j+1}")
    e(f"s_add_u32 s{S_CNT}, s{S_CNT}, 1")
    e(f"v_mfma_f32_16x16x32_bf16 {vr(ACC,4)}, {vr(OA0,4)}, {vr(OB0,4)}, {vr(ACC,4)}")
    e(f"v_mfma_f32_16x16x32_bf16 {vr(ACC+4,4)}, {vr(OA0,4)}, {vr(OB1,4)}, {vr(ACC+4,4)}")
    e(f"s_cmp_lt_u32 s{S_CNT}, {1 if o.no_kgen else 8}")
    e(f"v_mfma_f32_16x16x32_bf16 {vr(ACC+8,4)}, {vr(OA1,4)}, {vr(OB0,4)}, {vr(ACC+8,4)}")
    e(f"v_mfma_f32_16x16x32_bf16 {vr(ACC+12,4)}, {vr(OA1,4)}, {vr(OB1,4)}, {vr(ACC+12,4)}")
    e(f"s_cbranch_scc1 {lp}")
    if o.profile:
        e("s_memtime s[98:99]")
    P.stamp()
    SC, EX = 16, 32
    e("s_waitcnt lgkmcnt(0)")
    e(f"""v_lshlrev_b32 v{VT2}, 5, v1
    s_lshl_b32 s{S_T}, s{S_MH}, 11
    v_add_u32 v{VT3}, s{S_T}, v{VT2}
    buffer_load_dwordx4 {vr(SC,4)}, v{VT2}, {rs(R_WO)}, 0 offen offset:256
    buffer_load_dwordx4 {vr(SC+4,4)}, v{VT2}, {rs(R_WO)}, 0 offen offset:272
    buffer_load_dwordx4 {vr(EX,4)}, v{VT3}, {rs(R_WO)}, 0 offen offset:2304
    buffer_load_dwordx4 {vr(EX+4,4)}, v{VT3}, {rs(R_WO)}, 0 offen offset:2320
    s_lshl_b32 s{S_T}, s{S_WAVE}, 12
    v_mov_b32 v{VT2}, s{S_T}
    s_waitcnt vmcnt(2)""")
    AD = 48
    for i in range(16):
        sel = "WORD_0" if i % 2 == 0 else "WORD_1"
        e(f"v_add_u32_sdwa v{AD+i}, v{VT2}, v{SC+i//2} dst_sel:DWORD dst_unused:UNUSED_PAD src0_sel:DWORD src1_sel:{sel}")
    for i in range(16):
        e(f"ds_write_b32 v{AD+i}, v{ACC+i}")
    e(f"s_lshl_b32 s{S_T}, s{S_CH}, 13")
    e(f"v_mov_b32 v{VT2}, s{S_T}")
    e("s_waitcnt vmcnt(0)")
    for i in range(16):
        sel = "WORD_0" if i % 2 == 0 else "WORD_1"
        e(f"v_add_u32_sdwa v{AD+i}, v{VT2}, v{EX+i//2} dst_sel:DWORD dst_unused:UNUSED_PAD src0_sel:DWORD src1_sel:{sel}")
    e("s_waitcnt lgkmcnt(0)")
    e("s_barrier")
    KV, KW = 64, 80
    for i in range(16):
        e(f"ds_read_b32 v{KV+i}, v{AD+i}")
        e(f"ds_read_b32 v{KW+i}, v{AD+i} offset:4096")
    e(f"""s_mul_i32 s{S_T}, s{S_CH}, {KR_SZ}
    s_lshl_b32 s{S_T2}, s{S_MH}, 11
    s_add_u32 s{S_T}, s{S_T}, s{S_T2}
    s_add_u32 s{S_T}, s{S_T}, {A_KREV}
    v_lshlrev_b32 v{VT2}, 2, v1
    v_add_u32 v{VT2}, s{S_T}, v{VT2}
    s_waitcnt lgkmcnt(0)""")
    for i in range(8):
        e(f"v_pk_add_f32 {vr(KV+2*i,2)}, {vr(KV+2*i,2)}, {vr(KW+2*i,2)}")
    for i in range(8):
        e(f"v_cvt_pk_bf16_f32 v{KW+i}, v{KV+2*i}, v{KV+2*i+1}")
    for i in range(8):
        e(f"ds_write_b32 v{VT2}, v{KW+i} offset:{256*i}")
    VAB, VAA, VUE = 11, 12, 13
    e(f"""v_and_b32 v{VT0}, 15, v1
    v_lshrrev_b32 v{VT1}, 4, v1
    s_mul_i32 s{S_T}, s{S_CH}, {KR_SZ}
    s_add_u32 s{S_T}, s{S_T}, {A_KREV + 480}
    v_lshlrev_b32 v{VT2}, 5, v{VT0}
    v_sub_u32 v{VT2}, s{S_T}, v{VT2}
    v_lshl_add_u32 v{VAB}, v{VT1}, 4, v{VT2}
    v_add_u32 v{VT2}, 1, v{VT0}
    v_and_b32 v{VT2}, 3, v{VT2}
    v_mul_u32_u24 v{VT3}, {UC_CP}, v{VT2}
    v_sub_u32 v{VT2}, v{VT0}, v{VT2}
    v_add_u32 v{VT2}, 49, v{VT2}
    v_lshl_add_u32 v{VT2}, v{VT1}, 3, v{VT2}
    v_lshl_add_u32 v{VT2}, v{VT2}, 1, v{VT3}
    s_mul_i32 s{S_T}, s{S_CH}, {UC_CH}
    s_add_u32 s{S_T}, s{S_T}, {A_UC}
    v_add_u32 v{VAA}, s{S_T}, v{VT2}
    v_lshlrev_b32 v{VT2}, 5, v{VT0}
    v_lshl_add_u32 v{VT2}, v{VT1}, 3, v{VT2}
    v_add_u32 v{VUE}, s{S_T}, v{VT2}
    s_waitcnt lgkmcnt(0)
    s_barrier""")
    P.stamp()
    CACC = 96
    BF = (16, 48)
    AF = 80
    def conv_variant(Q):
        mq = max(Q)
        for r in range(CACC, CACC + 16):
            e(f"v_mov_b32 v{r}, 0")
        def breads(buf):
            for cp in range(mq + 1):
                e(f"ds_read_b128 {vr(BF[buf]+4*cp,4)}, v{VAB} offset:{512*(7-cp)}")
        def aread(a):
            f = AF + 4 * (a % 4)
            e(f"ds_read_b64 {vr(f,2)}, v{VAA} offset:{512*a}")
            e(f"ds_read_b64 {vr(f+2,2)}, v{VAA} offset:{512*a+8}")
        breads(0)
        e(f"v_add_u32 v{VAB}, 64, v{VAB}")
        e(f"s_mov_b32 s{S_CNT}, 0")
        lp = e.newlab("Lconv")
        e.label(lp)
        for half in range(2):
            aread(0); aread(1); aread(2)
            for a in range(mq + 1):
                if a + 3 <= mq: aread(a + 3)
                if a == 0:
                    e(f"s_waitcnt lgkmcnt({6 if 3 <= mq else 4})")
                else:
                    younger = 2 * (min(mq, a + 3) - a)
                    extra = (mq + 1) if False else 0
                    e(f"s_waitcnt lgkmcnt({min(15, younger + (nb[0] if nb else 0))})") if False else e(f"s_waitcnt lgkmcnt({younger})")
                for qi, q in enumerate(Q):
                    if q >= a:
                        e(f"v_mfma_f32_16x16x32_bf16 {vr(CACC+4*qi,4)}, {vr(AF+4*(a%4),4)}, {vr(BF[half]+4*(q-a),4)}, {vr(CACC+4*qi,4)}")
            breads(1 - half)
            e(f"v_add_u32 v{VAB}, 64, v{VAB}")
            e(f"v_add_u32 v{VAA}, 64, v{VAA}")
        e(f"s_add_u32 s{S_CNT}, s{S_CNT}, 1")
        e(f"s_cmp_lt_u32 s{S_CNT}, 4")
        e(f"s_cbranch_scc1 {lp}")
        e("s_waitcnt lgkmcnt(0)")
        for qi, q in enumerate(Q):
            e(f"ds_read_b64 {vr(16+2*qi,2)}, v{VUE} offset:{128 + 512*q}")
        e(f"""v_and_b32 v{VT0}, 15, v1
        v_lshrrev_b32 v{VT1}, 4, v1
        v_lshlrev_b32 v{VT2}, 5, v{VT0}
        v_lshl_add_u32 v{VT2}, v{VT1}, 3, v{VT2}
        s_lshl_b32 s{S_T}, s{S_CH}, 12
        v_add_u32 v{VT2}, s{S_T}, v{VT2}
        v_mov_b32 v40, s{S_DV}
        s_waitcnt lgkmcnt(0)""")
        for qi, q in enumerate(Q):
            u = 16 + 2 * qi
            e(f"""v_lshlrev_b32 v32, 16, v{u}
            v_and_b32 v33, 0xffff0000, v{u}
            v_lshlrev_b32 v34, 16, v{u+1}
            v_and_b32 v35, 0xffff0000, v{u+1}
            v_pk_fma_f32 v[32:33], v[32:33], v[40:41], {vr(CACC+4*qi,2)} op_sel_hi:[1,0,1]
            v_pk_fma_f32 v[34:35], v[34:35], v[40:41], {vr(CACC+4*qi+2,2)} op_sel_hi:[1,0,1]
            v_cvt_pk_bf16_f32 v{24+2*qi}, v32, v33
            v_cvt_pk_bf16_f32 v{25+2*qi}, v34, v35""")
        for qi, q in enumerate(Q):
            e(f"ds_write_b64 v{VT2}, {vr(24+2*qi,2)} offset:{A_YIMG + 512*q}")
    nb = None
    v1l = e.newlab("Lcv1"); vend = e.newlab("Lcve")
    e(f"s_cmp_eq_u32 s{S_MH}, 1")
    e(f"s_cbranch_scc1 {v1l}")
    conv_variant([0, 3, 4, 7])
    e(f"s_branch {vend}")
    e.label(v1l)
    conv_variant([1, 2, 5, 6])
    e.label(vend)
    e("s_waitcnt lgkmcnt(0)")
    e("s_barrier")
    P.stamp()
    e(f"""s_lshl_b32 s{S_T}, s{S_CH}, 12
    s_lshl_b32 s{S_T2}, s{S_MH}, 11
    s_add_u32 s{S_T}, s{S_T}, s{S_T2}
    v_lshlrev_b32 v{VT0}, 4, v1
    v_add_u32 v{VT1}, s{S_T}, v{VT0}
    ds_read_b128 v[16:19], v{VT1} offset:{A_YIMG}
    ds_read_b128 v[20:23], v{VT1} offset:{A_YIMG + 1024}
    s_add_u32 s{S_T3}, s{S_C0}, s{S_CH}
    s_lshl_b32 s{S_T3}, s{S_T3}, 12
    s_add_u32 s{S_T3}, s{S_T3}, s{S_T2}
    s_add_u32 s{S_T3}, s{S_T3}, {OFF_YT}
    s_waitcnt lgkmcnt(0)
    buffer_store_dwordx4 v[16:19], v{VT0}, {rs(R_WS)}, s{S_T3} offen sc1
    buffer_store_dwordx4 v[20:23], v{VT0}, {rs(R_WS)}, s{S_T3} offen offset:1024 sc1
    s_waitcnt vmcnt(0)
    s_barrier""")
    e(f"s_cmp_lg_u32 s{S_WAVE}, 0")
    e("s_cbranch_scc1 Lexit")
    calc_tag(e)
    e(f"s_lshl_b32 s{S_T}, s{S_PAIR}, {o.fsh}")
    e(f"s_add_u32 s{S_T}, s{S_T}, {OFF_YF}")
    store_flag(e, S_T, 2, 3)
    e(f"""s_lshl_b32 s{S_T}, s{S_CG}, {5 + o.fsh}
    s_add_u32 s{S_T}, s{S_T}, {OFF_YF}
    v_and_b32 v2, 31, v1
    v_lshlrev_b32 v2, {o.fsh}, v2
    v_add_u32 v2, s{S_T}, v2""")
    P.stamp()
    e("s_mov_b32 exec_hi, 0")
    poll_eq_tag(e, o, 2, 3)
    P.stamp()
    srd(e, R_OUT, S_OUT, 2048 * 1792)
    e(f"""v_lshrrev_b32 v2, 3, v1
    v_and_b32 v3, 7, v1
    v_lshlrev_b32 v3, 4, v3
    v_lshl_add_u32 v10, v2, 12, v3
    v_mul_u32_u24 v2, 1792, v2
    v_add_u32 v11, v2, v3
    s_lshl_b32 s{S_T}, s{S_CG}, 18
    s_lshl_b32 s{S_T2}, s{S_J}, 7
    s_add_u32 s{S_T}, s{S_T}, s{S_T2}
    s_add_u32 s{S_T}, s{S_T}, {OFF_YT}
    s_mul_i32 s{S_T3}, s{S_J}, {64*1792}
    s_lshl_b32 s{S_T2}, s{S_CG}, 7
    s_add_u32 s{S_T3}, s{S_T3}, s{S_T2}""")
    def ld(i, reg):
        e(f"buffer_load_dwordx4 {vr(reg,4)}, v10, {rs(R_WS)}, s{S_T} offen sc1")
        e(f"s_add_u32 s{S_T}, s{S_T}, {8*4096}")
    def st(i, reg):
        e(f"buffer_store_dwordx4 {vr(reg,4)}, v11, {rs(R_OUT)}, s{S_T3} offen")
        e(f"s_add_u32 s{S_T3}, s{S_T3}, {8*1792}")
    transpose64(e, ld, st, A_UC)
    if o.profile:
        e("s_waitcnt vmcnt(0)")
        P.stamp()
        e("s_waitcnt lgkmcnt(0)")
        e("s_sub_u32 s96, s98, s96")
        P.n = 9
        P.flush(100, S_T)
    e("s_endpgm")

    e.label("La_h2")
    P = Prof(e, o, 2)
    e("s_waitcnt lgkmcnt(0)")
    srd(e, R_WS, S_WS, WS_BYTES)
    srd(e, R_X, S_U, 2048 * 896)
    e(f"s_load_dword s{S_EP}, s[{S_WS}:{S_WS+1}], 0")
    P.stamp()
    e(f"""v_lshrrev_b32 v2, 3, v1
    v_and_b32 v3, 7, v1
    v_lshlrev_b32 v3, 4, v3
    v_mul_u32_u24 v10, 896, v2
    v_add_u32 v10, v10, v3
    v_mul_u32_u24 v11, {UT_PITCH}, v2
    v_add_u32 v11, v11, v3
    s_mul_i32 s{S_T}, s{S_J}, {64*896}
    s_lshl_b32 s{S_T2}, s{S_CG}, 7
    s_add_u32 s{S_T}, s{S_T}, s{S_T2}
    s_mul_i32 s{S_T3}, s{S_CG}, {64*UT_PITCH}
    s_add_u32 s{S_T3}, s{S_T3}, {OFF_UT}""")
    nz = e.newlab("Lnz")
    e(f"s_cmp_lg_u32 s{S_J}, 0")
    e(f"s_cbranch_scc1 {nz}")
    e(f"""v_mov_b32 v16, 0
    v_mov_b32 v17, 0
    v_mov_b32 v18, 0
    v_mov_b32 v19, 0
    s_mov_b32 s{S_T2}, s{S_T3}""")
    for i in range(8):
        e(f"buffer_store_dwordx4 v[16:19], v11, {rs(R_WS)}, s{S_T2} offen sc1")
        e(f"s_add_u32 s{S_T2}, s{S_T2}, {8*UT_PITCH}")
    e("s_waitcnt vmcnt(0)")
    e.label(nz)
    e(f"s_lshl_b32 s{S_T2}, s{S_J}, 7")
    e(f"s_add_u32 s{S_T3}, s{S_T3}, s{S_T2}")
    e(f"s_add_u32 s{S_T3}, s{S_T3}, 128")
    def ld2(i, reg):
        e(f"buffer_load_dwordx4 {vr(reg,4)}, v10, {rs(R_X)}, s{S_T} offen")
        e(f"s_add_u32 s{S_T}, s{S_T}, {8*896}")
    def st2(i, reg):
        e(f"buffer_store_dwordx4 {vr(reg,4)}, v11, {rs(R_WS)}, s{S_T3} offen sc1")
        e(f"s_add_u32 s{S_T3}, s{S_T3}, {8*UT_PITCH}")
    if o.h2_stop == 0:
        e("s_endpgm")
    if o.h2_stop == 1:
        for i in range(8): ld2(i, 16 + 4 * i)
        e("s_waitcnt vmcnt(0)")
        e("s_endpgm")
    transpose64(e, ld2, st2 if o.h2_stop != 2 else (lambda i, reg: None), A_UC)
    if o.h2_stop == 2:
        e("s_endpgm")
    e("s_waitcnt vmcnt(0) lgkmcnt(0)")
    calc_tag(e)
    e(f"""s_lshl_b32 s{S_T}, s{S_CG}, 5
    s_add_u32 s{S_T2}, s{S_T}, s{S_J}
    s_lshl_b32 s{S_T2}, s{S_T2}, {o.fsh}
    s_add_u32 s{S_T2}, s{S_T2}, {OFF_UF}""")
    store_flag(e, S_T2, 2, 3)
    if o.h2_stop == 3:
        e("s_endpgm")
    P.stamp()
    if o.h2_late:
        e("s_barrier")
    e(f"""s_lshl_b32 s{S_T}, s{S_T}, {o.fsh}
    s_add_u32 s{S_T}, s{S_T}, {OFF_UF}
    v_and_b32 v2, 31, v1
    v_lshlrev_b32 v2, {o.fsh}, v2
    v_add_u32 v2, s{S_T}, v2
    s_mov_b32 exec_hi, 0""")
    poll_eq_tag(e, o, 2, 3, sleep=o.usleep)
    if o.h2_stop == 4:
        e("s_endpgm")
    P.stamp()
    e(f"""v_lshlrev_b32 v4, 4, v1
    s_mul_i32 s{S_T}, s{S_C0}, {UT_PITCH}
    s_add_u32 s{S_T}, s{S_T}, {OFF_UT}""")
    for ch in range(2):
        e(f"s_mov_b32 m0, {A_UC + ch*UC_CH}")
        e("s_nop 0")
        for i in range(4):
            e(f"buffer_load_dwordx4 v4, {rs(R_WS)}, s{S_T} offen offset:{1024*i} sc1 lds")
        e(f"""s_add_u32 m0, m0, 4096
        s_add_u32 s{S_T2}, s{S_T}, 4096
        s_mov_b64 exec, 0xff
        buffer_load_dwordx4 v4, {rs(R_WS)}, s{S_T2} offen sc1 lds
        s_mov_b64 exec, -1
        s_add_u32 s{S_T}, s{S_T}, {UT_PITCH}""")
    e(f"v_add_u32 v5, {A_UC}, v4")
    e(f"s_mov_b32 s{S_CNT}, 0")
    e("s_waitcnt vmcnt(0)")
    lp = e.newlab("Luc")
    e.label(lp)
    for i in range(5):
        e(f"ds_read_b128 {vr(16+8*i,4)}, v5 offset:{1024*i}")
        e(f"ds_read_b128 {vr(20+8*i,4)}, v5 offset:{1024*i+16}")
    for i in range(5):
        d = 16 + 8 * i
        e(f"s_waitcnt lgkmcnt({min(15, 8 - 2*i + 3*i)})" if False else "s_waitcnt lgkmcnt(0)" if i == 0 else "s_nop 0")
        o1, o2, o3 = 64, 68, 72
        for k in range(4):
            e(f"v_alignbit_b32 v{o1+k}, v{d+k+1}, v{d+k}, 16")
            e(f"v_mov_b32 v{o2+k}, v{d+k+1}")
            e(f"v_alignbit_b32 v{o3+k}, v{d+k+2}, v{d+k+1}, 16")
        if i == 4: e("s_mov_b64 exec, 0xff")
        e(f"ds_write_b128 v5, {vr(o1,4)} offset:{UC_CP + 1024*i}")
        e(f"ds_write_b128 v5, {vr(o2,4)} offset:{2*UC_CP + 1024*i}")
        e(f"ds_write_b128 v5, {vr(o3,4)} offset:{3*UC_CP + 1024*i}")
        if i == 4: e("s_mov_b64 exec, -1")
        e("s_waitcnt lgkmcnt(0)")
    e(f"""v_add_u32 v5, {UC_CH}, v5
    s_add_u32 s{S_CNT}, s{S_CNT}, 1
    s_cmp_lt_u32 s{S_CNT}, 2
    s_cbranch_scc1 {lp}""")
    P.stamp()
    if not o.h2_late:
        e("s_barrier")
    e("s_barrier")
    P.flush(20, S_T)
    e("s_endpgm")


def generate(o):
    e = E()
    hdr = []
    hdr.append(f"; @launch grid=(512,1,1) block=(384,1,1) lds=81920")
    hdr.append('.amdgcn_target "amdgcn-amd-amdhsa--gfx950"')
    hdr.append(".text")
    hdr.append(f".globl {KNAME}")
    hdr.append(".p2align 8")
    hdr.append(f".type {KNAME},@function")
    hdr.append(f"{KNAME}:")
    e("s_cmp_ge_u32 s2, 512")
    e("s_cbranch_scc1 Lexit")
    if o.codepf:
        e("s_getpc_b64 s[6:7]")
        e.label("Lpc0")
    e("s_load_dwordx16 s[8:23], s[0:1], 0")
    e("s_load_dwordx16 s[24:39], s[0:1], 64")
    e("v_and_b32 v1, 63, v0")
    e("v_lshrrev_b32 v2, 6, v0")
    e("s_nop 0")
    e(f"v_readfirstlane_b32 s{S_WAVE}, v2")
    if o.codepf:
        e("s_lshr_b32 s40, s2, 3")
        e("s_and_b32 s40, s40, 31")
        e("s_lshl_b32 s40, s40, 10")
        e("s_cmp_ge_u32 s40, Lcode_end-Lpc0-1024")
        e("s_cbranch_scc1 Lnopf")
        e(f"s_cmp_lg_u32 s{S_WAVE}, 0")
        e("s_cbranch_scc1 Lnopf")
        e("v_lshlrev_b32 v3, 4, v1")
        e("v_add_u32 v3, s40, v3")
        e("global_load_dwordx4 v[124:127], v3, s[6:7]")
        e.label("Lnopf")
    e("s_cmp_ge_u32 s2, 256")
    e("s_cbranch_scc1 Lrole_a")
    if o.do_b:
        gen_b(e, o)
    else:
        e("s_endpgm")
    e.label("Lrole_a")
    gen_a(e, o)
    e.label("Lexit")
    e("s_endpgm")
    emit_tables(e)
    e(".fill 288, 4, 0xbf800000")
    e.label("Lcode_end")
    ftr = f"""
.section .rodata,"a"
.p2align 6
.amdhsa_kernel {KNAME}
  .amdhsa_next_free_vgpr 128
  .amdhsa_next_free_sgpr 102
  .amdhsa_accum_offset 128
  .amdhsa_group_segment_fixed_size 0
  .amdhsa_kernarg_size 128
  .amdhsa_user_sgpr_count 2
  .amdhsa_user_sgpr_kernarg_segment_ptr 1
  .amdhsa_system_sgpr_workgroup_id_x 1
.end_amdhsa_kernel
"""
    return "\n".join(hdr) + "\n" + e.text() + ftr

if __name__ == "__main__":
    o = Opt()
    for a in sys.argv[2:]:
        k, v = a.split("=")
        cur = getattr(o, k)
        setattr(o, k, type(cur)(int(v)))
    open(sys.argv[1], "w").write(generate(o))
```

```python
import sys
import numpy as np

NAME = "concat_heads__ssm_conv_s4__linear_kernel_hedgehog__prompt"
KNAME = NAME + "_kernel"

class Opt:
    profile = False
    do_a = True
    do_b = True
    spin_limit = 100000
    codepf = True
    xpf = False
    stagger = True
    clamp = False
    psleep = 4
    dbgtime = False
    usleep = 16
    h2_late = True
    h2_stop = 9
    fsh = 7
    prio = 0
    no_kgen = False
    no_h2 = False
    a_level = 3
    xpf2 = False

OFF_EPOCH = 0
OFF_CF = 0x11000
OFF_UF = 0x19000
OFF_YF = 0x21000
OFF_PROF = 0x40000
OFF_PART = 0x100000
OFF_OBUF = 0x200000
OFF_UT = 0x400000
UT_PITCH = 4224
OFF_YT = 0x600000
WS_BYTES = 256 << 20

class E:
    def __init__(self):
        self.lines = []
        self.nlab = 0
    def __call__(self, s):
        for ln in s.strip("\n").split("\n"):
            self.lines.append("  " + ln.strip())
    def label(self, name):
        self.lines.append(name + ":")
    def newlab(self, p="L"):
        self.nlab += 1
        return "%s_%d" % (p, self.nlab)
    def c(self, s):
        self.lines.append("  ; " + s)
    def text(self):
        return "\n".join(self.lines) + "\n"

def vr(b, n=1):
    return "v%d" % b if n == 1 else "v[%d:%d]" % (b, b + n - 1)

S_U, S_ARE, S_AIM, S_BRE, S_BIM, S_CRE, S_CIM, S_LDT = 8, 10, 12, 14, 16, 18, 20, 22
S_DSK, S_X, S_W, S_WPHI, S_WO, S_OUT, S_DBG, S_WS = 24, 26, 28, 30, 32, 34, 36, 38
S_WAVE, S_TAG, S_EP = 3, 4, 5
R_X, R_W, R_WS, R_WO, R_OUT, R_WPHI = 40, 44, 48, 52, 56, 60
S_PROF0 = 80
L2E = 0x3fb8aa3b
NL2E = 0xbfb8aa3b

def srd(e, r, sbase, nbytes):
    e(f"s_mov_b32 s{r}, s{sbase}")
    e(f"s_and_b32 s{r+1}, s{sbase+1}, 0xffff")
    e(f"s_mov_b32 s{r+2}, {nbytes}")
    e(f"s_mov_b32 s{r+3}, 0x20000")
def rs(r):
    return f"s[{r}:{r+3}]"

class Prof:
    def __init__(self, e, o, slot):
        self.e, self.o, self.n, self.slot = e, o, 0, slot
    def stamp(self):
        if not self.o.profile: return
        assert self.n < 10
        r = S_PROF0 + 2 * self.n
        self.e(f"s_memrealtime s[{r}:{r+1}]")
        self.n += 1
    def flush(self, vtmp, stmp):
        if not self.o.profile: return
        e = self.e
        e("s_waitcnt lgkmcnt(0)")
        e(f"s_lshl_b32 s{stmp}, s2, 8")
        e(f"s_add_u32 s{stmp}, s{stmp}, {OFF_PROF + self.slot * 64}")
        e(f"v_mov_b32 v{vtmp}, s{stmp}")
        for i in range(self.n):
            e(f"v_mov_b32 v{vtmp+1}, s{S_PROF0+2*i}")
            e(f"buffer_store_dword v{vtmp+1}, v{vtmp}, {rs(R_WS)}, 0 offen offset:{4*i}")
            e("s_nop 1")

def calc_tag(e):
    e(f"s_mul_i32 s{S_TAG}, s{S_EP}, 0x9e3779b1")
    e(f"s_add_u32 s{S_TAG}, s{S_TAG}, 0x85ebca6b")

def poll_eq_tag(e, o, vaddr, vtmp, first_issued=False, sleep=None):
    lp = e.newlab("Lpoll"); dn = e.newlab("Lpdone")
    e("s_mov_b32 s6, 0")
    e.label(lp)
    e(f"buffer_load_dword v{vtmp}, v{vaddr}, {rs(R_WS)}, 0 offen sc1")
    e("s_add_u32 s6, s6, 1")
    e("s_waitcnt vmcnt(0)")
    e(f"v_cmp_ne_u32 vcc, s{S_TAG}, v{vtmp}")
    e(f"s_cmp_gt_u32 s6, {o.spin_limit}")
    e(f"s_cbranch_scc1 {dn}")
    e(f"s_cbranch_vccz {dn}")
    e("s_mov_b64 exec, vcc")
    e(f"s_sleep {sleep if sleep is not None else o.psleep}")
    e(f"s_branch {lp}")
    e.label(dn)
    e("s_mov_b64 exec, -1")

def poll_not_poison(e, o, vaddr, soff, vtmp):
    lp = e.newlab("Lsp"); dn = e.newlab("Lsdone")
    e("s_mov_b32 s6, 0")
    e.label(lp)
    e(f"buffer_load_dword v{vtmp}, v{vaddr}, {rs(R_WS)}, s{soff} offen sc1")
    e("s_add_u32 s6, s6, 1")
    e("s_waitcnt vmcnt(0)")
    e(f"v_cmp_eq_u32 vcc, -1, v{vtmp}")
    e(f"s_cmp_gt_u32 s6, {o.spin_limit}")
    e(f"s_cbranch_scc1 {dn}")
    e(f"s_cbranch_vccnz {lp}")
    e.label(dn)

SLOT = 14336
IMG_PITCH = 72
IMG_SZ = 128 * IMG_PITCH
LDS_PHI = 75648
LDS_ZERO = LDS_PHI + 2048
LDS_KVX = LDS_ZERO + 128
assert LDS_KVX + 4096 == 81920
IMG_BASE = LDS_PHI - 3 * IMG_SZ
IMG_P, IMG_N, IMG_V = 0, IMG_SZ, 2 * IMG_SZ
WO_EARLY = IMG_BASE // 4096

S_XCD, S_IDX, S_RB, S_H, S_TB, S_CB = 64, 65, 66, 67, 68, 69
S_T, S_T2, S_T3, S_CNT, S_SL, S_XOFF, S_WOFF, S_M = 70, 71, 72, 73, 74, 75, 76, 77
S_L2E, S_NL2E = 78, 100

def decode_b(e, wgreg):
    e(f"""s_and_b32 s{S_XCD}, s{wgreg}, 7
    s_lshr_b32 s{S_IDX}, s{wgreg}, 3
    s_lshr_b32 s{S_RB}, s{S_XCD}, 1
    s_lshl_b32 s{S_RB}, s{S_RB}, 2
    s_and_b32 s{S_T}, s{S_IDX}, 3
    s_add_u32 s{S_RB}, s{S_RB}, s{S_T}
    s_and_b32 s{S_H}, s{S_XCD}, 1
    s_lshl_b32 s{S_H}, s{S_H}, 3
    s_lshr_b32 s{S_CB}, s{S_IDX}, 2
    s_add_u32 s{S_H}, s{S_H}, s{S_CB}
    s_lshl_b32 s{S_TB}, s{S_XCD}, 2
    s_add_u32 s{S_TB}, s{S_TB}, s{S_T}""")

def gen_b_loader(e, o):
    VX, VW = 2, 3
    VT0, VT1, VT2, VT3 = 10, 11, 12, 13
    VFL, VFA = 14, 15
    VWA, VWB, VWC = 16, 17, 18
    e.c("B loader waves")
    if o.stagger:
        e(f"""s_and_b32 s{S_T}, s{S_IDX}, 3
        s_mul_i32 s{S_T2}, s{S_CB}, 7
        s_lshr_b32 s{S_T2}, s{S_T2}, 2
        s_mul_i32 s{S_T}, s{S_T}, 7
        s_lshr_b32 s{S_T}, s{S_T}, 1
        s_add_u32 s{S_SL}, s{S_T}, s{S_T2}
        s_cmp_ge_u32 s{S_SL}, 14
        s_cselect_b32 s{S_T}, 14, 0
        s_sub_u32 s{S_SL}, s{S_SL}, s{S_T}""")
    else:
        e(f"s_mov_b32 s{S_SL}, 0")
    e(f"s_cmp_eq_u32 s{S_WAVE}, 5")
    e("s_cbranch_scc1 Lb_ldw")
    P = Prof(e, o, 1)
    e(f"""v_lshrrev_b32 v{VT0}, 2, v1
    v_lshrrev_b32 v{VT1}, 4, v1
    v_and_b32 v{VT2}, 3, v1
    v_xor_b32 v{VT1}, v{VT1}, v{VT2}
    v_and_b32 v{VT1}, 3, v{VT1}
    v_lshlrev_b32 v{VT1}, 4, v{VT1}
    s_lshl_b32 s{S_T}, s{S_RB}, 7
    v_add_u32 v{VT0}, s{S_T}, v{VT0}
    v_mul_u32_u24 v{VT0}, 896, v{VT0}
    v_add_u32 v{VX}, v{VT0}, v{VT1}
    s_lshl_b32 s{S_XOFF}, s{S_SL}, 6
    s_mov_b32 s{S_M}, 0
    s_mov_b32 s{S_CNT}, 0""")
    e("s_waitcnt lgkmcnt(0)")
    srd(e, R_X, S_X, 2048 * 896)
    srd(e, R_WS, S_WS, WS_BYTES)
    srd(e, R_WO, S_WO, 448 * 896)
    P.stamp()
    lp = e.newlab("Lldx"); skipw = e.newlab("Lldxn")
    e.label(lp)
    e(f"s_cmp_lt_u32 s{S_CNT}, 3")
    e(f"s_cbranch_scc1 {skipw}")
    e("s_waitcnt vmcnt(16)")
    e("s_barrier")
    e.label(skipw)
    for j in range(8):
        if j == 0:
            e(f"s_mov_b32 m0, s{S_M}")
            e(f"s_add_u32 s{S_T}, s{S_XOFF}, 14336")
            e(f"buffer_load_dwordx4 v{VX}, {rs(R_X)}, s{S_XOFF} offen lds")
        else:
            e(f"s_add_u32 m0, m0, 1024")
            if j < 7:
                e(f"s_add_u32 s{S_T2 if j % 2 else S_T}, s{S_T if j % 2 else S_T2}, 14336")
            else:
                e(f"s_add_u32 s{S_XOFF}, s{S_XOFF}, 64")
            e(f"buffer_load_dwordx4 v{VX}, {rs(R_X)}, s{S_T if j % 2 else S_T2} offen lds")
    e(f"""s_add_u32 s{S_M}, s{S_M}, {SLOT}
    s_cmp_eq_u32 s{S_XOFF}, 896
    s_cselect_b32 s{S_XOFF}, 0, s{S_XOFF}
    s_cmp_eq_u32 s{S_M}, {4*SLOT}
    s_cselect_b32 s{S_M}, 0, s{S_M}
    s_add_u32 s{S_CNT}, s{S_CNT}, 1
    s_cmp_lt_u32 s{S_CNT}, 14
    s_cbranch_scc1 {lp}""")
    e("s_waitcnt vmcnt(16)")
    e("s_barrier")
    e("s_waitcnt vmcnt(8)")
    e("s_barrier")
    e("s_waitcnt vmcnt(0)")
    e("s_barrier")
    P.stamp()
    e("s_barrier")
    P.stamp()
    e(f"""v_lshrrev_b32 v{VT0}, 3, v1          ; row_local
    v_and_b32 v{VT1}, 7, v1               ; chunk
    v_lshrrev_b32 v{VT2}, 1, v{VT1}       ; p32
    v_and_b32 v{VT1}, 1, v{VT1}
    v_lshlrev_b32 v{VT1}, 4, v{VT1}       ; half*16
    v_lshrrev_b32 v{VT3}, 1, v{VT0}
    v_and_b32 v{VT3}, 1, v{VT3}
    v_xor_b32 v{VT2}, v{VT2}, v{VT3}
    v_mul_u32_u24 v{VT0}, 896, v{VT0}
    s_lshl_b32 s{S_T}, s{S_CB}, 7
    v_add3_u32 v{VT0}, v{VT0}, v{VT1}, s{S_T}
    v_lshlrev_b32 v{VT3}, 5, v{VT2}
    v_add_u32 v{VWA}, v{VT0}, v{VT3}
    v_xor_b32 v{VT2}, 2, v{VT2}
    v_lshlrev_b32 v{VT3}, 5, v{VT2}
    v_add_u32 v{VWB}, v{VT0}, v{VT3}
    v_mov_b32 v{VT3}, 0x7ffffff0
    v_cmp_lt_u32 vcc, 31, v1
    s_nop 1
    v_cndmask_b32 v{VWC}, v{VWB}, v{VT3}, vcc""")
    def wo_loop(h0, h1):
        lp = e.newlab("Lwo")
        e(f"s_mov_b32 s{S_CNT}, {h0}")
        e(f"s_mov_b32 s{S_T}, {h0*28*896}")
        e(f"s_mov_b32 m0, {h0*4096}")
        e.label(lp)
        e(f"""s_add_u32 s{S_T2}, s{S_T}, {8*896}
        buffer_load_dwordx4 v{VWA}, {rs(R_WO)}, s{S_T} offen lds
        s_add_u32 m0, m0, 1024
        s_add_u32 s{S_T3}, s{S_T}, {16*896}
        buffer_load_dwordx4 v{VWA}, {rs(R_WO)}, s{S_T2} offen lds
        s_add_u32 m0, m0, 1024
        s_add_u32 s{S_T2}, s{S_T}, {24*896}
        buffer_load_dwordx4 v{VWB}, {rs(R_WO)}, s{S_T3} offen lds
        s_add_u32 m0, m0, 1024
        s_add_u32 s{S_T}, s{S_T}, {28*896}
        buffer_load_dwordx4 v{VWC}, {rs(R_WO)}, s{S_T2} offen lds
        s_add_u32 m0, m0, 1024
        s_add_u32 s{S_CNT}, s{S_CNT}, 1
        s_cmp_lt_u32 s{S_CNT}, {h1}
        s_cbranch_scc1 {lp}""")
    nowo = e.newlab("Lnowo"); nowo2 = e.newlab("Lnowo2"); fin = e.newlab("Lldfin")
    e(f"s_cmp_eq_u32 s{S_CB}, 7")
    e(f"s_cbranch_scc1 {nowo}")
    wo_loop(0, WO_EARLY)
    e.label(nowo)
    e("s_barrier")
    e("s_barrier")
    e(f"s_cmp_eq_u32 s{S_CB}, 7")
    e(f"s_cbranch_scc1 {nowo2}")
    wo_loop(WO_EARLY, 16)
    e.label(nowo2)
    e("s_barrier")
    e(f"s_cmp_eq_u32 s{S_CB}, 7")
    e(f"s_cbranch_scc1 {fin}")
    e("s_waitcnt vmcnt(0)")
    P.stamp()
    e("s_barrier")
    e.label(fin)
    P.flush(20, S_T)
    e("s_endpgm")
    e.label("Lb_ldw")
    e(f"s_mul_i32 s{S_T2}, s{S_H}, 56")
    for j in range(6):
        e(f"""v_add_u32 v{VT0}, {64*j}, v1
        v_mul_u32_u24 v{VT1}, 683, v{VT0}
        v_lshrrev_b32 v{VT1}, 13, v{VT1}
        v_mul_u32_u24 v{VT2}, 12, v{VT1}
        v_sub_u32 v{VT2}, v{VT0}, v{VT2}
        v_mul_u32_u24 v{VT1}, 2688, v{VT1}
        v_lshrrev_b32 v{VT3}, 2, v{VT2}
        v_mul_u32_u24 v{VT3}, 896, v{VT3}
        v_and_b32 v{VT2}, 3, v{VT2}
        v_lshlrev_b32 v{VT2}, 4, v{VT2}
        v_add3_u32 v{VT1}, v{VT1}, v{VT3}, v{VT2}
        v_add_u32 v{VW+j}, s{S_T2}, v{VT1}""")
    e(f"""s_mul_i32 s{S_WOFF}, s{S_SL}, 86016
    s_mov_b32 s{S_M}, 8192
    s_mov_b32 s{S_CNT}, 0""")
    e("s_waitcnt lgkmcnt(0)")
    srd(e, R_W, S_W, 448 * 2688)
    srd(e, R_WPHI, S_WPHI, 16 * 1568)
    srd(e, R_WS, S_WS, WS_BYTES)
    e(f"s_load_dword s{S_EP}, s[{S_WS}:{S_WS+1}], 0")
    e(f"""s_mul_i32 s{S_T}, s{S_H}, 1568
    v_lshlrev_b32 v{VT0}, 4, v1
    s_mov_b32 m0, {LDS_PHI}
    s_add_u32 s{S_T2}, s{S_T}, 1024""")
    lp = e.newlab("Lldw"); skipw = e.newlab("Lldwn")
    e.label(lp)
    e(f"s_cmp_lt_u32 s{S_CNT}, 3")
    e(f"s_cbranch_scc1 {skipw}")
    e("s_waitcnt vmcnt(12)")
    if o.profile:
        e("s_memrealtime s[80:81]")
        e("s_waitcnt lgkmcnt(0)")
        e(f"v_cmp_eq_u32 vcc, s{S_CNT}, v1")
        e("v_mov_b32 v29, s80")
        e("s_nop 0")
        e("v_cndmask_b32 v30, v30, v29, vcc")
    e("s_barrier")
    if o.profile:
        e("s_memrealtime s[80:81]")
        e("s_waitcnt lgkmcnt(0)")
        e("v_mov_b32 v29, s80")
        e("s_nop 0")
        e("v_cndmask_b32 v31, v31, v29, vcc")
    e.label(skipw)
    for j in range(6):
        if j == 0:
            e(f"s_mov_b32 m0, s{S_M}")
            e(f"s_add_u32 s{S_M}, s{S_M}, {SLOT}")
        else:
            e(f"s_add_u32 m0, m0, 1024")
            e("s_nop 0")
        e(f"buffer_load_dwordx4 v{VW+j}, {rs(R_W)}, s{S_WOFF} offen lds")
    npz = e.newlab("Lnphi")
    e(f"""s_add_u32 s{S_WOFF}, s{S_WOFF}, 86016
    s_cmp_eq_u32 s{S_WOFF}, {14*86016}
    s_cselect_b32 s{S_WOFF}, 0, s{S_WOFF}
    s_cmp_eq_u32 s{S_M}, {4*SLOT + 8192}
    s_cselect_b32 s{S_M}, 8192, s{S_M}
    s_add_u32 s{S_CNT}, s{S_CNT}, 1
    s_cmp_lt_u32 s{S_CNT}, 14
    s_cbranch_scc1 {lp}""")
    e(f"""s_mov_b32 m0, {LDS_PHI}
    s_nop 0
    buffer_load_dwordx4 v{VT0}, {rs(R_WPHI)}, s{S_T} offen lds
    s_mov_b32 m0, {LDS_PHI + 1024}
    s_nop 0
    buffer_load_dwordx4 v{VT0}, {rs(R_WPHI)}, s{S_T2} offen lds
    v_mov_b32 v16, -1
    v_mov_b32 v17, -1
    v_mov_b32 v18, -1
    v_mov_b32 v19, -1
    s_lshl_b32 s{S_T3}, s{S_H}, 4
    s_add_u32 s{S_T3}, s{S_T3}, s{S_RB}
    s_lshl_b32 s{S_T2}, s{S_T3}, 12
    s_add_u32 s{S_T2}, s{S_T2}, {OFF_PART}""")
    for i in range(4):
        e(f"buffer_store_dwordx4 {vr(16,4)}, v{VT0}, {rs(R_WS)}, s{S_T2} offen offset:{1024*i} sc1")
    e(f"""s_lshl_b32 s{S_T2}, s{S_RB}, 7
    s_add_u32 s{S_T2}, s{S_T2}, s{S_H}
    s_lshl_b32 s{S_T2}, s{S_T2}, 10
    s_add_u32 s{S_T2}, s{S_T2}, {OFF_OBUF}""")
    for i in range(8):
        e(f"buffer_store_dwordx4 {vr(16,4)}, v{VT0}, {rs(R_WS)}, s{S_T2} offen sc1")
        if i < 7: e(f"s_add_u32 s{S_T2}, s{S_T2}, 16384")
    e("""s_waitcnt vmcnt(26)
    s_barrier
    s_waitcnt vmcnt(20)
    s_barrier
    s_waitcnt vmcnt(14)
    s_barrier
    s_waitcnt vmcnt(12)
    s_barrier""")
    if o.profile:
        e(f"""s_lshl_b32 s{S_T}, s2, 8
        s_add_u32 s{S_T}, s{S_T}, {OFF_PROF + 128}
        v_lshlrev_b32 v20, 2, v1
        s_mov_b32 exec_hi, 0
        s_mov_b32 exec_lo, 0xffff
        buffer_store_dword v30, v20, {rs(R_WS)}, s{S_T} offen
        buffer_store_dword v31, v20, {rs(R_WS)}, s{S_T} offen offset:64
        s_mov_b64 exec, -1""")
    e("s_waitcnt vmcnt(0) lgkmcnt(0)")
    calc_tag(e)
    e(f"""s_lshl_b32 s{S_T3}, s{S_T3}, {o.fsh}
    s_add_u32 s{S_T3}, s{S_T3}, {OFF_CF}
    v_mov_b32 v{VT1}, s{S_T3}
    v_mov_b32 v{VT2}, s{S_TAG}
    s_mov_b64 exec, 1
    buffer_store_dword v{VT2}, v{VT1}, {rs(R_WS)}, 0 offen sc1
    s_mov_b64 exec, -1
    s_barrier""")
    e(f"""v_and_b32 v{VT0}, 15, v1
    s_lshl_b32 s{S_T}, s{S_H}, 4
    v_add_u32 v{VT1}, s{S_T}, v{VT0}
    v_lshlrev_b32 v{VT2}, 4, v{VT0}
    s_lshr_b32 s{S_T2}, s{S_TB}, 1
    v_add_u32 v{VT2}, s{S_T2}, v{VT2}
    v_lshrrev_b32 v{VT3}, 4, v1
    v_and_b32 v{VT3}, 1, v{VT3}
    v_cmp_eq_u32 vcc, 1, v{VT3}
    s_nop 1
    v_cndmask_b32 v{VT1}, v{VT1}, v{VT2}, vcc
    v_lshlrev_b32 v{VT1}, {o.fsh}, v{VT1}
    v_add_u32 v{VFA}, {OFF_CF}, v{VT1}
    s_mov_b32 exec_hi, 0""")
    poll_eq_tag(e, o, VFA, VFL)
    e("s_barrier")
    e("s_endpgm")

def gen_b(e, o):
    e.c("B role")
    if o.prio: e(f"s_setprio {o.prio}")
    decode_b(e, 2)
    e(f"s_cmp_ge_u32 s{S_WAVE}, 4")
    e("s_cbranch_scc1 Lb_loader")
    P = Prof(e, o, 0)
    VAX0, VAX1, VAW, VAIMG, VATR, VAPHI1, VAPHI2, VNINF = 2, 3, 4, 5, 6, 7, 8, 9
    VT0, VT1, VT2, VT3 = 10, 11, 12, 13
    VPF = 14
    ACC_K, ACC_V, ACC_Q = 16, 32, 48
    FA, FB = 64, 80
    APHI = 96
    S_MX = S_T3
    e(f"""s_mov_b32 s{S_L2E}, {L2E:#x}
    s_mov_b32 s{S_L2E+1}, {L2E:#x}
    s_mov_b32 s{S_NL2E}, {NL2E:#x}
    s_mov_b32 s{S_NL2E+1}, {NL2E:#x}""")
    def pf_x(j, vd):
        e(f"""s_lshl_b32 s{S_T}, s{S_IDX}, 6
        s_add_u32 s{S_T}, s{S_T}, {2048*j}
        v_add_u32 v{VT0}, s{S_T}, v1
        v_min_u32 v{VT0}, 7167, v{VT0}
        v_and_b32 v{VT1}, 511, v{VT0}
        s_lshr_b32 s{S_T2}, s{S_XCD}, 1
        s_lshl_b32 s{S_T2}, s{S_T2}, 9
        v_add_u32 v{VT1}, s{S_T2}, v{VT1}
        v_mul_u32_u24 v{VT1}, 896, v{VT1}
        v_lshrrev_b32 v{VT0}, 9, v{VT0}
        v_lshl_add_u32 v{VT0}, v{VT0}, 6, v{VT1}
        global_load_dword v{vd}, v{VT0}, s[{S_X}:{S_X+1}]""")
    def pf_w(j, vd):
        e(f"""s_lshl_b32 s{S_T}, s{S_IDX}, 6
        s_add_u32 s{S_T}, s{S_T}, {2048*j}
        v_add_u32 v{VT0}, s{S_T}, v1
        v_min_u32 v{VT0}, 9407, v{VT0}
        v_mul_u32_u24 v{VT1}, 3121, v{VT0}
        v_lshrrev_b32 v{VT1}, 16, v{VT1}          ; kr = n/21
        v_mul_u32_u24 v{VT2}, 21, v{VT1}
        v_sub_u32 v{VT2}, v{VT0}, v{VT2}          ; c
        v_mul_u32_u24 v{VT3}, 37, v{VT2}
        v_lshrrev_b32 v{VT3}, 8, v{VT3}           ; seg = c/7
        v_mul_u32_u24 v{VT0}, 7, v{VT3}
        v_sub_u32 v{VT2}, v{VT2}, v{VT0}          ; sec
        v_mul_u32_u24 v{VT1}, 2688, v{VT1}
        v_mul_u32_u24 v{VT3}, 896, v{VT3}
        v_lshlrev_b32 v{VT2}, 6, v{VT2}
        v_add3_u32 v{VT1}, v{VT1}, v{VT3}, v{VT2}
        s_and_b32 s{S_T2}, s{S_XCD}, 1
        s_mul_i32 s{S_T2}, s{S_T2}, 448
        v_add_u32 v{VT1}, s{S_T2}, v{VT1}
        global_load_dword v{vd}, v{VT1}, s[{S_W}:{S_W+1}]""")
    def by_wave(fns):
        end = e.newlab("Lwe")
        labs = [e.newlab("Lw") for _ in range(4)]
        for w in range(1, 4):
            e(f"s_cmp_eq_u32 s{S_WAVE}, {w}")
            e(f"s_cbranch_scc1 {labs[w]}")
        for w in range(4):
            e.label(labs[w])
            fns[w]()
            if w < 3: e(f"s_branch {end}")
        e.label(end)
    e("s_waitcnt lgkmcnt(0)")
    srd(e, R_WS, S_WS, WS_BYTES)
    P.stamp()
    if o.xpf:
        by_wave([lambda: pf_x(0, VPF), lambda: pf_w(0, VPF), lambda: pf_w(1, VPF), lambda: pf_x(1, VPF)])
        e("s_barrier")
        by_wave([lambda: (pf_w(2, VPF + 1)), lambda: (pf_x(2, VPF + 1), pf_w(4, VPF + 1)), lambda: pf_w(3, VPF + 1), lambda: pf_x(3, VPF + 1)])
    e(f"""s_lshl_b32 s{S_MX}, s{S_WAVE}, 11
    v_and_b32 v{VT0}, 31, v1
    v_lshrrev_b32 v{VT1}, 5, v1
    v_lshrrev_b32 v{VT2}, 2, v{VT0}
    v_and_b32 v{VT2}, 3, v{VT2}
    v_xor_b32 v{VT2}, v{VT2}, v{VT1}
    v_lshlrev_b32 v{VT2}, 4, v{VT2}
    v_lshlrev_b32 v{VT3}, 6, v{VT0}
    v_add3_u32 v{VAX0}, v{VT3}, v{VT2}, s{S_MX}
    v_xor_b32 v{VAX1}, 32, v{VAX0}
    s_lshl_b32 s{S_T}, s{S_WAVE}, 5
    v_add_u32 v{VT3}, s{S_T}, v{VT0}
    v_mul_u32_u24 v{VT3}, {IMG_PITCH}, v{VT3}
    v_lshlrev_b32 v{VT2}, 3, v{VT1}
    v_add_u32 v{VT3}, {IMG_BASE}, v{VT3}
    v_add_u32 v{VAIMG}, v{VT3}, v{VT2}
    v_lshrrev_b32 v{VT0}, 5, v1
    v_lshlrev_b32 v{VT0}, 3, v{VT0}
    v_lshrrev_b32 v{VT1}, 2, v1
    v_and_b32 v{VT1}, 3, v{VT1}          ; r
    v_add_u32 v{VT0}, v{VT0}, v{VT1}     ; row = 8*(j>>1)+r
    v_lshrrev_b32 v{VT2}, 4, v1
    v_and_b32 v{VT2}, 1, v{VT2}
    v_lshlrev_b32 v{VT2}, 5, v{VT2}
    v_and_b32 v{VT3}, 3, v1
    v_lshlrev_b32 v{VT3}, 3, v{VT3}
    v_add_u32 v{VT2}, v{VT2}, v{VT3}
    v_mul_u32_u24 v{VT3}, 192, v{VT0}
    v_add3_u32 v{VAW}, v{VT3}, v{VT2}, 0
    v_add_u32 v{VAW}, 8192, v{VAW}
    v_mul_u32_u24 v{VT3}, {IMG_PITCH}, v{VT0}
    v_add_u32 v{VT3}, {IMG_BASE}, v{VT3}
    v_add_u32 v{VATR}, v{VT3}, v{VT2}
    v_lshrrev_b32 v{VT0}, 5, v1
    v_lshlrev_b32 v{VT0}, 2, v{VT0}
    v_add_u32 v{VT0}, v{VT0}, v{VT1}     ; 4*hi + r
    v_mul_u32_u24 v{VT0}, 56, v{VT0}
    v_add_u32 v{VT0}, v{VT0}, v{VT2}
    v_add_u32 v{VAPHI1}, {LDS_PHI}, v{VT0}
    v_add_u32 v{VAPHI2}, {LDS_PHI + 24*56}, v{VT0}
    v_mov_b32 v{VT3}, {LDS_ZERO}
    v_cmp_lt_u32 vcc, 31, v1
    v_mov_b32 v{VNINF}, 0xff800000
    s_nop 0
    v_cndmask_b32 v{VAPHI2}, v{VAPHI2}, v{VT3}, vcc
    v_lshlrev_b32 v{VT0}, 2, v1
    v_add_u32 v{VT0}, {LDS_ZERO}, v{VT0}
    v_mov_b32 v{VT1}, 0
    s_mov_b32 exec_hi, 0
    ds_write_b32 v{VT0}, v{VT1}
    s_mov_b32 exec_hi, -1""")
    for r in range(ACC_K, ACC_K + 48):
        e(f"v_mov_b32 v{r}, 0")
    def reads(u, F):
        e(f"ds_read_b128 {vr(F,4)}, v{VAX0 if u == 0 else VAX1}")
        for idx, seg in enumerate((1, 2, 0)):
            w = F + 4 + 4 * idx
            e(f"ds_read_b64_tr_b16 {vr(w,2)}, v{VAW} offset:{u*3072 + seg*64}")
            e(f"ds_read_b64_tr_b16 {vr(w+2,2)}, v{VAW} offset:{u*3072 + seg*64 + 768}")
    def mfmas(F):
        for idx, acc in enumerate((ACC_K, ACC_V, ACC_Q)):
            w = F + 4 + 4 * idx
            e(f"v_mfma_f32_32x32x16_bf16 {vr(acc,16)}, {vr(w,4)}, {vr(F,4)}, {vr(acc,16)}")
    e("s_waitcnt lgkmcnt(0)")
    e("s_barrier")
    P.stamp()
    if o.profile: e("s_memtime s[60:61]")
    reads(0, FA)
    e(f"s_mov_b32 s{S_CNT}, 0")
    e(f"s_mov_b32 s{S_SL}, {(-3*SLOT) & 0xffffffff:#x}")
    lp = e.newlab("Lmain")
    e.label(lp)
    reads(1, FB)
    e(f"""s_add_u32 s{S_CNT}, s{S_CNT}, 1
    s_and_b32 s{S_T}, s{S_CNT}, 3
    s_cmp_eq_u32 s{S_T}, 0
    s_cselect_b32 s{S_T}, s{S_SL}, {SLOT}""")
    e("s_waitcnt lgkmcnt(7)")
    mfmas(FA)
    e(f"v_add_u32 v{VAX0}, s{S_T}, v{VAX0}")
    e("s_waitcnt lgkmcnt(0)")
    e(f"v_add_u32 v{VAX1}, s{S_T}, v{VAX1}")
    e(f"v_add_u32 v{VAW}, s{S_T}, v{VAW}")
    e("s_barrier")
    reads(0, FA)
    mfmas(FB)
    e(f"s_cmp_lt_u32 s{S_CNT}, 14")
    e(f"s_cbranch_scc1 {lp}")
    P.stamp()
    if o.profile: e("s_memtime s[62:63]")
    e(f"ds_read_b64_tr_b16 {vr(APHI,2)}, v{VAPHI1}")
    e(f"ds_read_b64_tr_b16 {vr(APHI+2,2)}, v{VAPHI1} offset:{8*56}")
    e(f"ds_read_b64_tr_b16 {vr(APHI+4,2)}, v{VAPHI1} offset:{16*56}")
    e(f"ds_read_b64_tr_b16 {vr(APHI+6,2)}, v{VAPHI2}")
    e("s_mov_b32 vcc_lo, 0")
    e("s_mov_b32 vcc_hi, -1")
    e("s_nop 7")
    e("s_waitcnt lgkmcnt(0)")

    PP, KB, EP = 64, 80, 104
    M, N, M2, N2, C, D = 88, 89, 90, 91, 92, 93
    TP, TP2, TN, TN2 = 94, 120, 122, 124
    SP, SN = 90, 92
    def feature(acc):
        EN = PP
        for i in range(8):
            e(f"v_cvt_pk_bf16_f32 v{KB+i}, v{acc+2*i}, v{acc+2*i+1}")
        e("s_nop 1")
        e(f"v_mfma_f32_32x32x16_bf16 {vr(PP,16)}, {vr(APHI,4)}, {vr(KB,4)}, 0")
        e(f"v_mfma_f32_32x32x16_bf16 {vr(PP,16)}, {vr(APHI+4,4)}, {vr(KB+4,4)}, {vr(PP,16)}")
        e("s_nop 11")
        p = lambda i: f"v{PP+i}"
        e(f"v_max3_f32 v{M}, {p(0)}, {p(1)}, {p(2)}")
        e(f"v_max3_f32 v{N}, -{p(0)}, -{p(1)}, -{p(2)}")
        e(f"v_max3_f32 v{M2}, {p(12)}, {p(13)}, {p(14)}")
        e(f"v_max3_f32 v{N2}, -{p(12)}, -{p(13)}, -{p(14)}")
        for a in (3, 5, 7, 9):
            e(f"v_max3_f32 v{M}, v{M}, {p(a)}, {p(a+1)}")
            e(f"v_max3_f32 v{N}, v{N}, -{p(a)}, -{p(a+1)}")
        e(f"v_max_f32 v{M2}, v{M2}, {p(15)}")
        e(f"v_max_f32_e64 v{N2}, v{N2}, -{p(15)}")
        e(f"v_cndmask_b32 v{M2}, v{M2}, v{VNINF}, vcc")
        e(f"v_cndmask_b32 v{N2}, v{N2}, v{VNINF}, vcc")
        e(f"v_max3_f32 v{M}, v{M}, {p(11)}, v{M2}")
        e(f"v_max3_f32 v{N}, v{N}, -{p(11)}, v{N2}")
        e("s_nop 1")
        e(f"v_permlane32_swap_b32 v{M}, v{N}")
        e("s_nop 0")
        e(f"v_max_f32 v{C}, v{M}, v{N}")
        e(f"v_mov_b32 v{D}, v{C}")
        e("s_nop 1")
        e(f"v_permlane32_swap_b32 v{C}, v{D}")
        e("s_nop 0")
        e(f"v_mul_f32 v{TP}, {NL2E:#x}, v{C}")
        e(f"v_mul_f32 v{TN}, {NL2E:#x}, v{D}")
        e(f"v_cndmask_b32 v{TP2}, v{TP}, v{VNINF}, vcc")
        e(f"v_cndmask_b32 v{TN2}, v{TN}, v{VNINF}, vcc")
        for i in range(8):
            tp = TP if i < 6 else TP2
            tn = TN if i < 6 else TN2
            e(f"v_pk_fma_f32 {vr(EP+2*i,2)}, {vr(PP+2*i,2)}, s[{S_L2E}:{S_L2E+1}], {vr(tp,2)} op_sel_hi:[1,1,0]")
            e(f"v_pk_fma_f32 {vr(EN+2*i,2)}, {vr(PP+2*i,2)}, s[{S_NL2E}:{S_NL2E+1}], {vr(tn,2)} op_sel_hi:[1,1,0]")
        for i in range(16):
            e(f"v_exp_f32 v{EP+i}, v{EP+i}")
            e(f"v_exp_f32 v{EN+i}, v{EN+i}")
        e(f"v_pk_add_f32 {vr(SP,2)}, {vr(EP,2)}, {vr(EP+2,2)}")
        e(f"v_pk_add_f32 {vr(SN,2)}, {vr(EN,2)}, {vr(EN+2,2)}")
        for i in range(2, 8):
            e(f"v_pk_add_f32 {vr(SP,2)}, {vr(SP,2)}, {vr(EP+2*i,2)}")
            e(f"v_pk_add_f32 {vr(SN,2)}, {vr(SN,2)}, {vr(EN+2*i,2)}")
        e(f"v_add_f32 v{M}, v{SP}, v{SP+1}")
        e(f"v_add_f32 v{N}, v{SN}, v{SN+1}")
        e("s_nop 1")
        e(f"v_permlane32_swap_b32 v{M}, v{N}")
        e("s_nop 0")
        e(f"v_add_f32 v{M2}, v{M}, v{N}")
        e(f"v_rcp_f32 v{TP}, v{M2}")
        e("s_nop 0")
        e(f"v_mov_b32 v{TN}, v{TP}")
        e("s_nop 1")
        e(f"v_permlane32_swap_b32 v{TP}, v{TN}")
        e("s_nop 0")
        for i in range(8):
            e(f"v_pk_mul_f32 {vr(EP+2*i,2)}, {vr(EP+2*i,2)}, {vr(TP,2)} op_sel_hi:[1,0]")
            e(f"v_pk_mul_f32 {vr(EN+2*i,2)}, {vr(EN+2*i,2)}, {vr(TN,2)} op_sel_hi:[1,0]")
        for i in range(8):
            e(f"v_cvt_pk_bf16_f32 v{acc+i}, v{EP+2*i}, v{EP+2*i+1}")
            e(f"v_cvt_pk_bf16_f32 v{acc+8+i}, v{EN+2*i}, v{EN+2*i+1}")
    feature(ACC_K)
    e(f"v_mov_b32 v{M}, 1.0")
    e(f"v_mov_b32 v{N}, 0")
    e(f"v_cndmask_b32 v{ACC_V+12}, v{ACC_V+12}, v{M}, vcc")
    for r in (13, 14, 15):
        e(f"v_cndmask_b32 v{ACC_V+r}, v{ACC_V+r}, v{N}, vcc")
    for i in range(8):
        e(f"v_cvt_pk_bf16_f32 v{ACC_V+i}, v{ACC_V+2*i}, v{ACC_V+2*i+1}")
    for a in range(4):
        e(f"ds_write_b64 v{VAIMG}, {vr(ACC_K+2*a,2)} offset:{IMG_P + 16*a}")
        e(f"ds_write_b64 v{VAIMG}, {vr(ACC_K+8+2*a,2)} offset:{IMG_N + 16*a}")
        e(f"ds_write_b64 v{VAIMG}, {vr(ACC_V+2*a,2)} offset:{IMG_V + 16*a}")
    e("s_waitcnt lgkmcnt(0)")
    e("s_barrier")
    P.stamp()
    lab_nokv = e.newlab("Lnokv")
    e(f"s_cmp_ge_u32 s{S_WAVE}, 2")
    e(f"s_cbranch_scc1 {lab_nokv}")
    KVD = 104
    e(f"s_mul_i32 s{S_T}, s{S_WAVE}, {IMG_SZ}")
    e(f"v_add_u32 v{VT0}, s{S_T}, v{VATR}")
    FR = 64
    def kvreads(u, a):
        e(f"ds_read_b64_tr_b16 {vr(a,2)}, v{VT0} offset:{IMG_P + 1152*u}")
        e(f"ds_read_b64_tr_b16 {vr(a+2,2)}, v{VT0} offset:{IMG_P + 1152*u + 288}")
        e(f"ds_read_b64_tr_b16 {vr(a+4,2)}, v{VATR} offset:{IMG_V + 1152*u}")
        e(f"ds_read_b64_tr_b16 {vr(a+6,2)}, v{VATR} offset:{IMG_V + 1152*u + 288}")
    for u in range(3): kvreads(u, FR + 8 * u)
    for u in range(8):
        if u + 3 < 8:
            kvreads(u + 3, FR + 8 * ((u + 3) % 4))
            e("s_waitcnt lgkmcnt(12)")
        else:
            e(f"s_waitcnt lgkmcnt({(7-u)*4})")
        a = FR + 8 * (u % 4)
        c_in = "0" if u == 0 else vr(KVD, 16)
        e(f"v_mfma_f32_32x32x16_bf16 {vr(KVD,16)}, {vr(a,4)}, {vr(a+4,4)}, {c_in}")
    e(f"""s_lshl_b32 s{S_T}, s{S_H}, 4
    s_add_u32 s{S_T}, s{S_T}, s{S_RB}
    s_lshl_b32 s{S_T}, s{S_T}, 12
    s_lshl_b32 s{S_T2}, s{S_WAVE}, 11
    s_add_u32 s{S_T}, s{S_T}, s{S_T2}
    s_add_u32 s{S_T}, s{S_T}, {OFF_PART}
    v_lshlrev_b32 v{VT1}, 4, v1
    s_nop 4""")
    for i in range(8):
        e(f"v_cvt_pk_bf16_f32 v{FR+i}, v{KVD+2*i}, v{KVD+2*i+1}")
    e(f"""buffer_store_dwordx4 {vr(FR,4)}, v{VT1}, {rs(R_WS)}, s{S_T} offen sc1
    buffer_store_dwordx4 {vr(FR+4,4)}, v{VT1}, {rs(R_WS)}, s{S_T} offen offset:1024 sc1
    s_nop 1""")
    e.label(lab_nokv)
    P.stamp()
    feature(ACC_Q)
    e("s_barrier")
    PR = 64
    SL = 16
    h1 = e.newlab("Lh1"); h1d = e.newlab("Lh1d")
    e(f"""s_lshl_b32 s{S_T3}, s{S_H}, 16
    s_lshl_b32 s{S_T2}, s{S_WAVE}, 10
    s_add_u32 s{S_T3}, s{S_T3}, s{S_T2}
    s_add_u32 s{S_T3}, s{S_T3}, {OFF_PART}
    v_lshlrev_b32 v{VT1}, 4, v1
    s_mov_b32 s{S_CNT}, 0
    s_mov_b32 s{S_XOFF}, 0x00003f80
    s_mov_b32 s{S_WOFF}, 0x3f800000""")
    e.label(h1)
    e(f"s_mov_b32 s{S_T}, s{S_T3}")
    for p_ in range(16):
        e(f"buffer_load_dwordx4 {vr(PR+4*p_,4)}, v{VT1}, {rs(R_WS)}, s{S_T} offen sc1")
        if p_ < 15:
            e(f"s_add_u32 s{S_T}, s{S_T}, 4096")
    for j in range(8):
        e(f"v_mov_b32 v{SL+j}, 0")
    for p_ in range(16):
        e(f"s_waitcnt vmcnt({15-p_})")
        for j in range(4):
            e(f"v_dot2_f32_bf16 v{SL+2*j}, v{PR+4*p_+j}, s{S_XOFF}, v{SL+2*j}")
            e(f"v_dot2_f32_bf16 v{SL+2*j+1}, v{PR+4*p_+j}, s{S_WOFF}, v{SL+2*j+1}")
    e("s_nop 2")
    e(f"""v_pk_add_f32 {vr(24,2)}, {vr(SL,2)}, {vr(SL+2,2)}
    v_pk_add_f32 {vr(26,2)}, {vr(SL+4,2)}, {vr(SL+6,2)}
    v_pk_add_f32 {vr(24,2)}, {vr(24,2)}, {vr(26,2)}
    v_add_f32 v24, v24, v25
    s_add_u32 s{S_CNT}, s{S_CNT}, 1
    v_cmp_u_f32 vcc, v24, v24
    s_cmp_gt_u32 s{S_CNT}, {o.spin_limit // 8}
    s_cbranch_scc1 {h1d}
    s_cbranch_vccnz {h1}""")
    e.label(h1d)
    for j in range(4):
        e(f"v_cvt_pk_bf16_f32 v{24+j}, v{SL+2*j}, v{SL+2*j+1}")
    e(f"""s_lshl_b32 s{S_T}, s{S_WAVE}, 10
    s_add_u32 s{S_T}, s{S_T}, {LDS_KVX}
    v_add_u32 v{VT2}, s{S_T}, v{VT1}
    v_add_u32 v{VT3}, {LDS_KVX}, v{VT1}
    ds_write_b128 v{VT2}, {vr(24,4)}
    s_waitcnt lgkmcnt(0)
    s_barrier""")
    P.stamp()
    KVF, ND = 64, 80
    for t in range(4):
        e(f"ds_read_b128 {vr(KVF+4*t,4)}, v{VT3} offset:{1024*t}")
    e(f"""v_and_b32 v{VT0}, 31, v1
    v_lshrrev_b32 v{VT2}, 4, v{VT0}
    v_lshlrev_b32 v{VT2}, 14, v{VT2}
    v_and_b32 v{VT0}, 15, v{VT0}
    v_lshlrev_b32 v{VT0}, 4, v{VT0}
    v_lshrrev_b32 v{VT3}, 5, v1
    v_lshlrev_b32 v{VT3}, 9, v{VT3}
    v_add3_u32 v{VT0}, v{VT0}, v{VT2}, v{VT3}
    s_lshl_b32 s{S_T}, s{S_RB}, 3
    s_lshl_b32 s{S_T2}, s{S_WAVE}, 1
    s_add_u32 s{S_T}, s{S_T}, s{S_T2}
    s_lshl_b32 s{S_T}, s{S_T}, 4
    s_add_u32 s{S_T}, s{S_T}, s{S_H}
    s_lshl_b32 s{S_T}, s{S_T}, 10
    s_add_u32 s{S_T}, s{S_T}, {OFF_OBUF}""")
    for t in range(4):
        e(f"s_waitcnt lgkmcnt({3-t})")
        c_in = "0" if t == 0 else vr(ND, 16)
        e(f"v_mfma_f32_32x32x16_bf16 {vr(ND,16)}, {vr(KVF+4*t,4)}, {vr(ACC_Q+4*t,4)}, {c_in}")
    e("s_nop 11")
    e(f"""v_mov_b32 v96, v{ND+12}
    v_mov_b32 v98, v{ND+12}
    s_nop 1
    v_permlane32_swap_b32 v96, v98
    s_nop 0
    v_add_f32 v98, 0x358637bd, v98
    v_rcp_f32 v98, v98
    s_nop 0""")
    for i in range(8):
        e(f"v_pk_mul_f32 {vr(ND+2*i,2)}, {vr(ND+2*i,2)}, {vr(98,2)} op_sel_hi:[1,0]")
    for i in range(8):
        e(f"v_cvt_pk_bf16_f32 v{100+i}, v{ND+2*i}, v{ND+2*i+1}")
    e(f"""buffer_store_dwordx4 {vr(100,4)}, v{VT0}, {rs(R_WS)}, s{S_T} offen sc1
    buffer_store_dwordx4 {vr(104,4)}, v{VT0}, {rs(R_WS)}, s{S_T} offen offset:256 sc1""")
    P.stamp()
    lab_skip_final = e.newlab("Lnofinal")
    e(f"s_cmp_eq_u32 s{S_CB}, 7")
    e(f"s_cbranch_scc1 {lab_skip_final}")
    OF, WF, ACC, VA = 64, 16, 48, 2
    e(f"""s_lshl_b32 s{S_T3}, s{S_TB}, 2
    s_add_u32 s{S_T3}, s{S_T3}, s{S_WAVE}
    s_lshl_b32 s{S_T3}, s{S_T3}, 14
    s_add_u32 s{S_T3}, s{S_T3}, {OFF_OBUF}
    v_and_b32 v{VT0}, 15, v1
    v_lshlrev_b32 v{VT0}, 10, v{VT0}""")
    e(f"""v_lshrrev_b32 v6, 4, v1          ; g'
    v_and_b32 v7, 1, v6           ; t
    v_lshrrev_b32 v6, 1, v6       ; hi
    v_lshrrev_b32 v8, 2, v1
    v_and_b32 v8, 3, v8           ; r
    v_lshlrev_b32 v9, 4, v7       ; 16t
    v_lshl_add_u32 v9, v6, 2, v9   ; 16t + 4hi
    v_add_u32 v9, v9, v8      ; d
    v_lshlrev_b32 v9, 7, v9       ; d*128
    v_and_b32 v6, 3, v1
    v_lshl_add_u32 v9, v6, 3, v9   ; + c*8
    v_lshrrev_b32 v8, 1, v8
    v_lshl_add_u32 v8, v7, 1, v8   ; f""")
    for ct in range(4):
        e(f"v_xor_b32 v6, {ct}, v8")
        e(f"v_lshl_add_u32 v{VA+ct}, v6, 5, v9")
    poll_not_poison(e, o, VT0, S_T3, VT2)
    P.stamp()
    e(f"s_mov_b32 s{S_CNT}, 0")
    h2 = e.newlab("Lh2"); h2d = e.newlab("Lh2d")
    e.label(h2)
    e(f"s_mov_b32 s{S_T}, s{S_T3}")
    for hh in range(16):
        if hh % 4 == 0 and hh:
            e(f"s_add_u32 s{S_T}, s{S_T}, 4096")
        e(f"buffer_load_dwordx4 {vr(OF+4*hh,4)}, v{VT1}, {rs(R_WS)}, s{S_T} offen offset:{(hh%4)*1024} sc1")
    first = e.newlab("Lh2w")
    e(f"s_cmp_lg_u32 s{S_CNT}, 0")
    e(f"s_cbranch_scc1 {first}")
    e("s_barrier")
    e.label(first)
    def wreads(hh, s):
        for ct in range(4):
            w = WF + 16 * s + 4 * ct
            e(f"ds_read_b64_tr_b16 {vr(w,2)}, v{VA+ct} offset:{hh*4096}")
            e(f"ds_read_b64_tr_b16 {vr(w+2,2)}, v{VA+ct} offset:{hh*4096 + 1024}")
    wreads(0, 0)
    for hh in range(16):
        if hh + 1 < 16:
            wreads(hh + 1, (hh + 1) % 2)
            e(f"s_waitcnt vmcnt({15-hh}) lgkmcnt(8)")
        else:
            e(f"s_waitcnt vmcnt(0) lgkmcnt(0)")
        for ct in range(4):
            w = WF + 16 * (hh % 2) + 4 * ct
            c_in = "0" if hh == 0 else vr(ACC + 4 * ct, 4)
            e(f"v_mfma_f32_16x16x32_bf16 {vr(ACC+4*ct,4)}, {vr(w,4)}, {vr(OF+4*hh,4)}, {c_in}")
    e("s_nop 7")
    e(f"""v_add_f32 v6, v{ACC}, v{ACC+4}
    v_add_f32 v7, v{ACC+8}, v{ACC+12}
    v_add_f32 v6, v6, v7
    s_add_u32 s{S_CNT}, s{S_CNT}, 1
    v_cmp_u_f32 vcc, v6, v6
    s_cmp_gt_u32 s{S_CNT}, {o.spin_limit // 8}
    s_cbranch_scc1 {h2d}
    s_cbranch_vccnz {h2}""")
    e.label(h2d)
    P.stamp()
    srd(e, R_OUT, S_OUT, 2048 * 1792)
    X0 = 16
    for pr in range(2):
        X = X0 + 4 * pr
        e(f"v_cvt_pk_bf16_f32 v{X}, v{ACC+8*pr}, v{ACC+8*pr+1}")
        e(f"v_cvt_pk_bf16_f32 v{X+1}, v{ACC+8*pr+2}, v{ACC+8*pr+3}")
        e(f"v_cvt_pk_bf16_f32 v{X+2}, v{ACC+8*pr+4}, v{ACC+8*pr+5}")
        e(f"v_cvt_pk_bf16_f32 v{X+3}, v{ACC+8*pr+6}, v{ACC+8*pr+7}")
    e(f"""v_and_b32 v{VT0}, 15, v1
    s_lshl_b32 s{S_T}, s{S_TB}, 6
    s_lshl_b32 s{S_T2}, s{S_WAVE}, 4
    s_add_u32 s{S_T}, s{S_T}, s{S_T2}
    v_add_u32 v{VT0}, s{S_T}, v{VT0}
    v_mul_u32_u24 v{VT0}, 1792, v{VT0}
    v_lshrrev_b32 v{VT2}, 4, v1""")
    for pr in range(2):
        X = X0 + 4 * pr
        e(f"v_permlane16_swap_b32 v{X}, v{X+2}")
        e(f"v_permlane16_swap_b32 v{X+1}, v{X+3}")
    e(f"""v_and_b32 v{VT3}, 1, v{VT2}
    v_lshlrev_b32 v{VT3}, 5, v{VT3}
    v_lshrrev_b32 v{VT2}, 1, v{VT2}
    v_lshlrev_b32 v{VT2}, 4, v{VT2}
    v_add3_u32 v{VT0}, v{VT0}, v{VT2}, v{VT3}
    s_lshl_b32 s{S_T}, s{S_CB}, 7
    s_add_u32 s{S_T}, s{S_T}, 896
    buffer_store_dwordx4 {vr(X0,4)}, v{VT0}, {rs(R_OUT)}, s{S_T} offen
    buffer_store_dwordx4 {vr(X0+4,4)}, v{VT0}, {rs(R_OUT)}, s{S_T} offen offset:64""")
    e.label(lab_skip_final)
    lab3 = e.newlab("Lnoep")
    e(f"""s_or_b32 s{S_T}, s2, s{S_WAVE}
    s_cmp_lg_u32 s{S_T}, 0
    s_cbranch_scc1 {lab3}
    s_load_dword s{S_EP}, s[{S_WS}:{S_WS+1}], 0
    s_waitcnt lgkmcnt(0)""")
    calc_tag(e)
    if o.do_a and o.a_level == 3:
        for i in range(4):
            e(f"""v_add_u32 v30, {64*i}, v1
            v_min_u32 v30, 223, v30
            v_lshlrev_b32 v30, {o.fsh}, v30
            v_add_u32 v30, {OFF_YF}, v30""")
            poll_eq_tag(e, o, 30, 31, sleep=8)
    e(f"""v_mov_b32 v30, 0
    v_mov_b32 v31, s{S_TAG}
    s_mov_b64 exec, 1
    buffer_store_dword v31, v30, {rs(R_WS)}, 0 offen sc1
    s_mov_b64 exec, -1""")
    e.label(lab3)
    if o.dbgtime:
        labd = e.newlab("Lnodbg")
        e(f"""s_and_b32 s{S_T}, s2, 63
        s_or_b32 s{S_T}, s{S_T}, s{S_WAVE}
        s_cmp_lg_u32 s{S_T}, 0
        s_cbranch_scc1 {labd}
        s_waitcnt vmcnt(0)
        s_memrealtime s[96:97]
        s_waitcnt lgkmcnt(0)
        s_lshr_b32 s{S_T}, s2, 6
        s_lshl_b32 s{S_T}, s{S_T}, 3
        v_mov_b32 v40, s{S_T}
        v_mov_b32 v42, s98
        v_mov_b32 v43, s96
        global_store_dwordx2 v40, v[42:43], s[{S_DBG}:{S_DBG+1}]""")
        e.label(labd)
    if o.profile:
        lab4 = e.newlab("Lnoprof")
        e("s_waitcnt vmcnt(0)")
        P.stamp()
        e(f"s_cmp_lg_u32 s{S_WAVE}, 0")
        e(f"s_cbranch_scc1 {lab4}")
        e("s_waitcnt lgkmcnt(0)")
        e("s_sub_u32 s98, s62, s60")
        P.n = 10
        P.flush(32, S_T)
        e.label(lab4)
    e("s_endpgm")
    e.label("Lb_loader")
    gen_b_loader(e, o)

def gen_a_helper_clears(e, o, P):
    VT0, VT1 = 10, 11
    e(f"""v_lshlrev_b32 v{VT0}, 4, v1
    v_mov_b32 v16, -1
    v_mov_b32 v17, -1
    v_mov_b32 v18, -1
    v_mov_b32 v19, -1
    s_lshl_b32 s{S_T}, s{S_H}, 4
    s_add_u32 s{S_T}, s{S_T}, s{S_RB}
    s_lshl_b32 s{S_T2}, s{S_T}, 12
    s_add_u32 s{S_T2}, s{S_T2}, {OFF_PART}""")
    for i in range(4):
        e(f"buffer_store_dwordx4 {vr(16,4)}, v{VT0}, {rs(R_WS)}, s{S_T2} offen offset:{1024*i} sc1")
    e(f"""s_lshl_b32 s{S_T2}, s{S_RB}, 7
    s_add_u32 s{S_T2}, s{S_T2}, s{S_H}
    s_lshl_b32 s{S_T2}, s{S_T2}, 10
    s_add_u32 s{S_T2}, s{S_T2}, {OFF_OBUF}""")
    for i in range(8):
        e(f"buffer_store_dwordx4 {vr(16,4)}, v{VT0}, {rs(R_WS)}, s{S_T2} offen sc1")
        if i < 7: e(f"s_add_u32 s{S_T2}, s{S_T2}, 16384")
    e("s_waitcnt vmcnt(0) lgkmcnt(0)")
    calc_tag(e)
    e(f"""s_lshl_b32 s{S_T}, s{S_T}, 2
    s_add_u32 s{S_T}, s{S_T}, {OFF_CF}
    v_mov_b32 v{VT0}, s{S_T}
    v_mov_b32 v{VT1}, s{S_TAG}
    s_mov_b64 exec, 1
    buffer_store_dword v{VT1}, v{VT0}, {rs(R_WS)}, 0 offen sc1
    s_mov_b64 exec, -1""")

A_PARAM, A_KTAB, A_KREV, A_UC = 0, 16384, 22528, 31744
A_YIMG = 0
KT_SZ, KR_SZ, UC_CP, UC_CH = 3072, 4608, 4288, 17152
S_CG, S_J, S_C0, S_PAIR = 64, 65, 66, 67

def bf16r_np(x):
    u = np.float32(x).view(np.uint32)
    return (((u + 0x7FFF + ((u >> 16) & 1)) >> 16) << 16).astype(np.uint32).view(np.float32)
HI_TAB = [0,1,2,3,4,5,6,7,512,516,1024,1536,2048,0,0,0]
def kpos(l):
    return l if l < 128 else int(np.float32(l).view(np.uint32) >> 16) - 17024
def tables():
    scat = np.zeros((64, 16), np.uint16)
    for lane in range(64):
        c, g = lane & 15, lane >> 4
        for i in range(2):
            for j in range(2):
                for r in range(4):
                    m = 4 * g + r
                    l = HI_TAB[m] + 256 * i + 128 * j + 8 * c
                    ok = m < 13 and l <= 2048 and float(bf16r_np(l)) == l
                    scat[lane, (i * 2 + j) * 4 + r] = 4 * (kpos(l) if ok else 704 + lane)
    ex = np.zeros((2, 64, 8, 2), np.uint16)
    for mh in range(2):
        for lane in range(64):
            for i in range(8):
                for b in range(2):
                    x = 1024 * mh + 128 * i + 2 * lane + b
                    ex[mh, lane, i, b] = 4 * kpos(int(bf16r_np(2047 - x)))
    ex = ex.reshape(-1)
    la = np.array([HI_TAB[l & 15] for l in range(64)], np.float32)
    return scat, ex, la

def emit_tables(e):
    scat, ex, la = tables()
    e.lines.append(".p2align 6")
    e.label("Ltab_la")
    for v in la.view(np.uint32): e(f".long {int(v):#x}")
    e.label("Ltab_scat")
    for v in scat.reshape(-1).view(np.uint32): e(f".long {int(v):#x}")
    e.label("Ltab_exp")
    for v in ex.view(np.uint32): e(f".long {int(v):#x}")

def transpose64(e, load_fn, store_fn, lds):
    TR1, TR2 = lds, lds + 9216
    VA1, VA2, VA3 = 4, 5, 6
    L, R = 16, 48
    for i in range(8): load_fn(i, L + 4 * i)
    e(f"""v_lshrrev_b32 v7, 3, v1
    v_mul_u32_u24 v7, 144, v7
    v_and_b32 v8, 7, v1
    v_lshl_add_u32 v7, v8, 4, v7
    v_add_u32 v{VA1}, {TR1}, v7
    v_lshrrev_b32 v7, 4, v1
    v_lshrrev_b32 v8, 2, v1
    v_and_b32 v8, 3, v8
    v_lshl_add_u32 v8, v7, 3, v8
    v_mul_u32_u24 v8, 144, v8
    v_and_b32 v9, 3, v1
    v_lshl_add_u32 v8, v9, 3, v8
    v_add_u32 v{VA2}, {TR1}, v8
    v_and_b32 v8, 15, v1
    v_mul_u32_u24 v8, 144, v8
    v_lshl_add_u32 v8, v7, 4, v8
    v_add_u32 v{VA3}, {TR2}, v8""")
    for i in range(8):
        e(f"s_waitcnt vmcnt({7-i})")
        e(f"ds_write_b128 v{VA1}, {vr(L+4*i,4)} offset:{8*144*i}")
    e("s_waitcnt lgkmcnt(0)")
    for cj in range(4):
        for pp in range(2):
            r = R + 4 * (cj * 2 + pp)
            e(f"ds_read_b64_tr_b16 {vr(r,2)}, v{VA2} offset:{32*144*pp + cj*32}")
            e(f"ds_read_b64_tr_b16 {vr(r+2,2)}, v{VA2} offset:{32*144*pp + cj*32 + 4*144}")
    e("s_waitcnt lgkmcnt(0)")
    for cj in range(4):
        for pp in range(2):
            r = R + 4 * (cj * 2 + pp)
            e(f"ds_write_b128 v{VA3}, {vr(r,4)} offset:{16*144*cj + 64*pp}")
    e("s_waitcnt lgkmcnt(0)")
    e(f"v_add_u32 v{VA1}, 9216, v{VA1}")
    for i in range(8):
        e(f"ds_read_b128 {vr(L+4*i,4)}, v{VA1} offset:{8*144*i}")
    for i in range(8):
        e(f"s_waitcnt lgkmcnt({7-i})")
        store_fn(i, L + 4 * i)

def store_flag(e, soff_reg, va, vb):
    e(f"""v_mov_b32 v{va}, s{soff_reg}
    v_mov_b32 v{vb}, s{S_TAG}
    s_mov_b64 exec, 1
    buffer_store_dword v{vb}, v{va}, {rs(R_WS)}, 0 offen sc1
    s_mov_b64 exec, -1""")

def gen_a(e, o):
    e.c("A role")
    e(f"s_sub_u32 s{S_SL}, s2, 256")
    e(f"s_cmp_eq_u32 s{S_WAVE}, 4")
    e("s_cbranch_scc1 Lexit")
    e(f"""s_and_b32 s{S_CG}, s{S_SL}, 7
    s_lshr_b32 s{S_J}, s{S_SL}, 3
    s_cmp_eq_u32 s{S_CG}, 7
    s_cbranch_scc1 Lexit
    s_lshl_b32 s{S_PAIR}, s{S_CG}, 5
    s_add_u32 s{S_PAIR}, s{S_PAIR}, s{S_J}
    s_lshl_b32 s{S_C0}, s{S_PAIR}, 1""")
    if o.a_level == 0:
        e("s_endpgm")
    e(f"s_cmp_eq_u32 s{S_WAVE}, 5")
    e("s_cbranch_scc1 La_h2")
    if o.a_level == 1:
        e("s_endpgm")
    P = Prof(e, o, 0)
    S_CH, S_MH, S_DT, S_DV = 68, 69, 60, 61
    S_TB_ = 76
    VT0, VT1, VT2, VT3 = 2, 3, 4, 5
    VLA, VLB, VPA = 6, 8, 10
    e(f"""s_lshr_b32 s{S_CH}, s{S_WAVE}, 1
    s_and_b32 s{S_MH}, s{S_WAVE}, 1
    s_add_u32 s{S_T}, s{S_C0}, s{S_CH}
    s_lshl_b32 s{S_T}, s{S_T}, 9
    s_lshl_b32 s{S_T2}, s{S_MH}, 8
    s_add_u32 s{S_T}, s{S_T}, s{S_T2}
    v_lshlrev_b32 v{VT0}, 2, v1
    v_add_u32 v{VT0}, s{S_T}, v{VT0}
    s_getpc_b64 s[76:77]""")
    e.label("La_pc")
    e(f"""s_add_u32 s76, s76, Ltab_la-La_pc
    s_addc_u32 s77, s77, 0
    v_lshlrev_b32 v{VT1}, 2, v1
    s_lshl_b32 s{S_T2}, s{S_C0}, 1
    s_mov_b32 s{S_L2E}, {L2E:#x}
    s_waitcnt lgkmcnt(0)""")
    srd(e, R_WS, S_WS, WS_BYTES)
    IN = 16
    for k, base in enumerate((S_ARE, S_AIM, S_BRE, S_BIM, S_CRE, S_CIM)):
        r = (R_X, R_W)[k % 2]
        srd(e, r, base, 448 * 512)
        e(f"buffer_load_dword v{IN+2*k}, v{VT0}, {rs(r)}, 0 offen")
    srd(e, R_WO, 76, 6400)
    e(f"buffer_load_dword v{VLA}, v{VT1}, {rs(R_WO)}, 0 offen")
    e(f"s_add_u32 s62, s{S_LDT}, s{S_T2}")
    e(f"s_addc_u32 s63, s{S_LDT+1}, 0")
    e(f"s_load_dword s{S_DT}, s[62:63], 0")
    e(f"s_add_u32 s6, s{S_DSK}, s{S_T2}")
    e(f"s_addc_u32 s7, s{S_DSK+1}, 0")
    e(f"s_load_dword s{S_DV}, s[6:7], 0")
    e(f"s_load_dword s{S_EP}, s[{S_WS}:{S_WS+1}], 0")
    P.stamp()
    e(f"""v_mov_b32 v32, 0
    v_mov_b32 v33, 0
    v_mov_b32 v34, 0
    v_mov_b32 v35, 0
    v_lshlrev_b32 v{VT2}, 4, v1
    s_mul_i32 s{S_T}, s{S_CH}, {KR_SZ}
    s_add_u32 s{S_T}, s{S_T}, {A_KREV + 4096}
    v_add_u32 v{VT3}, s{S_T}, v{VT2}
    s_mov_b32 exec_hi, 0
    ds_write_b128 v{VT3}, v[32:35]
    s_mov_b32 exec_hi, -1
    v_and_b32 v{VT2}, 15, v1
    v_lshlrev_b32 v{VT2}, 3, v{VT2}
    v_cvt_f32_u32 v{VLB}, v{VT2}
    v_lshrrev_b32 v{VT2}, 4, v1
    v_lshlrev_b32 v{VT2}, 7, v{VT2}
    s_lshl_b32 s{S_T}, s{S_WAVE}, 12
    v_add_u32 v{VPA}, s{S_T}, v{VT2}
    s_waitcnt lgkmcnt(0)""")
    DT = 32
    e(f"""s_lshl_b32 s{S_T}, s{S_CH}, 4
    s_lshr_b32 s{S_DT}, s{S_DT}, s{S_T}
    s_lshl_b32 s{S_DT}, s{S_DT}, 16
    s_lshr_b32 s{S_DV}, s{S_DV}, s{S_T}
    s_lshl_b32 s{S_DV}, s{S_DV}, 16
    v_mov_b32 v33, s{S_DT}
    v_mul_f32 v34, s{S_L2E}, v33
    v_fma_f32 v35, v33, s{S_L2E}, -v34
    v_mov_b32 v36, 0x32a57060
    v_fmac_f32 v35, v33, v36
    v_exp_f32 v34, v34
    v_mul_f32 v35, 0x3f317218, v35
    s_nop 0
    v_fma_f32 v34, v34, v35, v34
    v_cvt_pk_bf16_f32 v34, v34, v34
    v_and_b32 v{DT}, 0xffff0000, v34""")
    e("s_waitcnt vmcnt(0)")
    for k in range(6):
        e(f"v_and_b32 v{IN+2*k+1}, 0xffff0000, v{IN+2*k}")
        e(f"v_lshlrev_b32 v{IN+2*k}, 16, v{IN+2*k}")
    ARE, AIM, BRE, BIM, CRE, CIM = [IN + 2 * k for k in range(6)]
    for m in range(2):
        PP0 = 40 + 8 * m
        t0, t1, t2, t3 = 56, 57, 58, 59
        e(f"""v_mul_f32 v{t0}, v{DT}, v{ARE+m}
        v_mul_f32 v{PP0}, s{S_L2E}, v{t0}
        v_mul_f32 v{t0}, v{DT}, v{AIM+m}
        v_mul_f32 v{PP0+1}, 0.15915494, v{t0}
        v_mul_f32 v{t0}, v{DT}, v{BRE+m}
        v_mul_f32 v{t1}, v{DT}, v{BIM+m}
        v_mul_f32 v{t2}, v{CIM+m}, v{t1}
        v_fma_f32 v{PP0+2}, v{CRE+m}, v{t0}, -v{t2}
        v_mul_f32 v{t2}, v{CIM+m}, v{t0}
        v_fma_f32 v{PP0+3}, v{CRE+m}, v{t1}, v{t2}
        v_mul_f32 v{t0}, 0x43000000, v{PP0}
        v_mul_f32 v{t1}, 0x43000000, v{PP0+1}
        v_fract_f32 v{t1}, v{t1}
        v_exp_f32 v{t0}, v{t0}
        v_cos_f32 v{t2}, v{t1}
        v_sin_f32 v{t3}, v{t1}
        s_nop 0
        v_mul_f32 v{PP0+4}, v{t0}, v{t2}
        v_mul_f32 v{PP0+5}, v{t0}, v{t3}
        v_mul_f32 v{t0}, v{PP0+5}, v{PP0+5}
        v_fma_f32 v{PP0+6}, v{PP0+4}, v{PP0+4}, -v{t0}
        v_mul_f32 v{t0}, v{PP0+4}, v{PP0+5}
        v_add_f32 v{PP0+7}, v{t0}, v{t0}""")
    e(f"""v_lshlrev_b32 v{VT2}, 6, v1
    s_lshl_b32 s{S_T}, s{S_WAVE}, 12
    v_add_u32 v{VT2}, s{S_T}, v{VT2}
    ds_write_b128 v{VT2}, v[40:43]
    ds_write_b128 v{VT2}, v[44:47] offset:16
    ds_write_b128 v{VT2}, v[48:51] offset:32
    ds_write_b128 v{VT2}, v[52:55] offset:48
    s_waitcnt lgkmcnt(0)""")
    P.stamp()
    PA, QA = 16, 32
    TA, TB, CA, CB = 48, 56, 64, 72
    OA0, OA1, OB0, OB1 = 80, 84, 88, 92
    ACC = 96
    for r in range(ACC, ACC + 16):
        e(f"v_mov_b32 v{r}, 0")
    e(f"s_mov_b32 s{S_CNT}, 0")
    lp = e.newlab("Lkg")
    def preads():
        for j in range(4):
            e(f"ds_read_b128 {vr(PA+4*j,4)}, v{VPA} offset:{32*j}")
        for j in range(4):
            e(f"ds_read_b128 {vr(QA+4*j,4)}, v{VPA} offset:{32*j+16}")
    if o.profile:
        e("s_memtime s[96:97]")
        e("s_waitcnt lgkmcnt(0)")
    preads()
    e.label(lp)
    e("s_waitcnt lgkmcnt(4)")
    for j in range(4):
        e(f"v_pk_mul_f32 {vr(TA+2*j,2)}, {vr(PA+4*j,2)}, {vr(VLA,2)} op_sel_hi:[1,0]")
        e(f"v_pk_mul_f32 {vr(TB+2*j,2)}, {vr(PA+4*j,2)}, {vr(VLB,2)} op_sel_hi:[1,0]")
    for j in range(4):
        e(f"v_fract_f32 v{TA+2*j+1}, v{TA+2*j+1}")
        e(f"v_fract_f32 v{TB+2*j+1}, v{TB+2*j+1}")
    for j in range(4):
        e(f"v_exp_f32 v{TA+2*j}, v{TA+2*j}")
        e(f"v_cos_f32 v{CA+2*j}, v{TA+2*j+1}")
        e(f"v_sin_f32 v{CA+2*j+1}, v{TA+2*j+1}")
        e(f"v_exp_f32 v{TB+2*j}, v{TB+2*j}")
        e(f"v_cos_f32 v{CB+2*j}, v{TB+2*j+1}")
        e(f"v_sin_f32 v{CB+2*j+1}, v{TB+2*j+1}")
    e("s_waitcnt lgkmcnt(0)")
    for j in range(4):
        e(f"v_pk_mul_f32 {vr(CA+2*j,2)}, {vr(CA+2*j,2)}, {vr(TA+2*j,2)} op_sel_hi:[1,0]")
        e(f"v_pk_mul_f32 {vr(CB+2*j,2)}, {vr(CB+2*j,2)}, {vr(TB+2*j,2)} op_sel_hi:[1,0]")
    def cmul(d, t, a, b):
        return (f"v_pk_mul_f32 {vr(t,2)}, {vr(a,2)}, {vr(b,2)} op_sel_hi:[1,0]",
                f"v_pk_fma_f32 {vr(d,2)}, {vr(a,2)}, {vr(b,2)}, {vr(t,2)} op_sel:[1,1,0] op_sel_hi:[0,1,1] neg_lo:[0,1,0]")
    for j in range(4):
        e(cmul(TA+2*j, TA+2*j, CA+2*j, PA+4*j+2)[0])
        e(cmul(TB+2*j, TB+2*j, CB+2*j, QA+4*j)[0])
    for j in range(4):
        e(cmul(TA+2*j, TA+2*j, CA+2*j, PA+4*j+2)[1])
        e(cmul(TB+2*j, TB+2*j, CB+2*j, QA+4*j)[1])
    for j in range(4):
        e(f"v_cvt_pk_bf16_f32 v{OB0+j}, v{CB+2*j}, v{CB+2*j+1}")
        e(cmul(CA+2*j, CA+2*j, TA+2*j, QA+4*j+2)[0])
    for j in range(4):
        e(f"v_cvt_pk_bf16_f32 v{OA0+j}, v{TA+2*j}, -v{TA+2*j+1}")
        e(cmul(CA+2*j, CA+2*j, TA+2*j, QA+4*j+2)[1])
    e(f"v_add_u32 v{VPA}, 512, v{VPA}")
    for j in range(4):
        e(f"v_cvt_pk_bf16_f32 v{OB1+j}, v{TB+2*j}, v{TB+2*j+1}")
    preads()
    for j in range(4):
        e(f"v_cvt_pk_bf16_f32 v{OA1+j}, v{CA+2*j}, -v{CA+2*j+1}")
    e(f"s_add_u32 s{S_CNT}, s{S_CNT}, 1")
    e(f"v_mfma_f32_16x16x32_bf16 {vr(ACC,4)}, {vr(OA0,4)}, {vr(OB0,4)}, {vr(ACC,4)}")
    e(f"v_mfma_f32_16x16x32_bf16 {vr(ACC+4,4)}, {vr(OA0,4)}, {vr(OB1,4)}, {vr(ACC+4,4)}")
    e(f"s_cmp_lt_u32 s{S_CNT}, {1 if o.no_kgen else 8}")
    e(f"v_mfma_f32_16x16x32_bf16 {vr(ACC+8,4)}, {vr(OA1,4)}, {vr(OB0,4)}, {vr(ACC+8,4)}")
    e(f"v_mfma_f32_16x16x32_bf16 {vr(ACC+12,4)}, {vr(OA1,4)}, {vr(OB1,4)}, {vr(ACC+12,4)}")
    e(f"s_cbranch_scc1 {lp}")
    if o.profile:
        e("s_memtime s[98:99]")
    P.stamp()
    SC, EX = 16, 32
    e("s_waitcnt lgkmcnt(0)")
    e(f"""v_lshlrev_b32 v{VT2}, 5, v1
    s_lshl_b32 s{S_T}, s{S_MH}, 11
    v_add_u32 v{VT3}, s{S_T}, v{VT2}
    buffer_load_dwordx4 {vr(SC,4)}, v{VT2}, {rs(R_WO)}, 0 offen offset:256
    buffer_load_dwordx4 {vr(SC+4,4)}, v{VT2}, {rs(R_WO)}, 0 offen offset:272
    buffer_load_dwordx4 {vr(EX,4)}, v{VT3}, {rs(R_WO)}, 0 offen offset:2304
    buffer_load_dwordx4 {vr(EX+4,4)}, v{VT3}, {rs(R_WO)}, 0 offen offset:2320
    s_lshl_b32 s{S_T}, s{S_WAVE}, 12
    v_mov_b32 v{VT2}, s{S_T}
    s_waitcnt vmcnt(2)""")
    AD = 48
    for i in range(16):
        sel = "WORD_0" if i % 2 == 0 else "WORD_1"
        e(f"v_add_u32_sdwa v{AD+i}, v{VT2}, v{SC+i//2} dst_sel:DWORD dst_unused:UNUSED_PAD src0_sel:DWORD src1_sel:{sel}")
    for i in range(16):
        e(f"ds_write_b32 v{AD+i}, v{ACC+i}")
    e(f"s_lshl_b32 s{S_T}, s{S_CH}, 13")
    e(f"v_mov_b32 v{VT2}, s{S_T}")
    e("s_waitcnt vmcnt(0)")
    for i in range(16):
        sel = "WORD_0" if i % 2 == 0 else "WORD_1"
        e(f"v_add_u32_sdwa v{AD+i}, v{VT2}, v{EX+i//2} dst_sel:DWORD dst_unused:UNUSED_PAD src0_sel:DWORD src1_sel:{sel}")
    e("s_waitcnt lgkmcnt(0)")
    e("s_barrier")
    KV, KW = 64, 80
    for i in range(16):
        e(f"ds_read_b32 v{KV+i}, v{AD+i}")
        e(f"ds_read_b32 v{KW+i}, v{AD+i} offset:4096")
    e(f"""s_mul_i32 s{S_T}, s{S_CH}, {KR_SZ}
    s_lshl_b32 s{S_T2}, s{S_MH}, 11
    s_add_u32 s{S_T}, s{S_T}, s{S_T2}
    s_add_u32 s{S_T}, s{S_T}, {A_KREV}
    v_lshlrev_b32 v{VT2}, 2, v1
    v_add_u32 v{VT2}, s{S_T}, v{VT2}
    s_waitcnt lgkmcnt(0)""")
    for i in range(8):
        e(f"v_pk_add_f32 {vr(KV+2*i,2)}, {vr(KV+2*i,2)}, {vr(KW+2*i,2)}")
    for i in range(8):
        e(f"v_cvt_pk_bf16_f32 v{KW+i}, v{KV+2*i}, v{KV+2*i+1}")
    for i in range(8):
        e(f"ds_write_b32 v{VT2}, v{KW+i} offset:{256*i}")
    VAB, VAA, VUE = 11, 12, 13
    e(f"""v_and_b32 v{VT0}, 15, v1
    v_lshrrev_b32 v{VT1}, 4, v1
    s_mul_i32 s{S_T}, s{S_CH}, {KR_SZ}
    s_add_u32 s{S_T}, s{S_T}, {A_KREV + 480}
    v_lshlrev_b32 v{VT2}, 5, v{VT0}
    v_sub_u32 v{VT2}, s{S_T}, v{VT2}
    v_lshl_add_u32 v{VAB}, v{VT1}, 4, v{VT2}
    v_add_u32 v{VT2}, 1, v{VT0}
    v_and_b32 v{VT2}, 3, v{VT2}
    v_mul_u32_u24 v{VT3}, {UC_CP}, v{VT2}
    v_sub_u32 v{VT2}, v{VT0}, v{VT2}
    v_add_u32 v{VT2}, 49, v{VT2}
    v_lshl_add_u32 v{VT2}, v{VT1}, 3, v{VT2}
    v_lshl_add_u32 v{VT2}, v{VT2}, 1, v{VT3}
    s_mul_i32 s{S_T}, s{S_CH}, {UC_CH}
    s_add_u32 s{S_T}, s{S_T}, {A_UC}
    v_add_u32 v{VAA}, s{S_T}, v{VT2}
    v_lshlrev_b32 v{VT2}, 5, v{VT0}
    v_lshl_add_u32 v{VT2}, v{VT1}, 3, v{VT2}
    v_add_u32 v{VUE}, s{S_T}, v{VT2}
    s_waitcnt lgkmcnt(0)
    s_barrier""")
    P.stamp()
    CACC = 96
    BF = (16, 48)
    AF = 80
    def conv_variant(Q):
        mq = max(Q)
        for r in range(CACC, CACC + 16):
            e(f"v_mov_b32 v{r}, 0")
        def breads(buf):
            for cp in range(mq + 1):
                e(f"ds_read_b128 {vr(BF[buf]+4*cp,4)}, v{VAB} offset:{512*(7-cp)}")
        def aread(a):
            f = AF + 4 * (a % 4)
            e(f"ds_read_b64 {vr(f,2)}, v{VAA} offset:{512*a}")
            e(f"ds_read_b64 {vr(f+2,2)}, v{VAA} offset:{512*a+8}")
        breads(0)
        e(f"v_add_u32 v{VAB}, 64, v{VAB}")
        e(f"s_mov_b32 s{S_CNT}, 0")
        lp = e.newlab("Lconv")
        e.label(lp)
        for half in range(2):
            aread(0); aread(1); aread(2)
            for a in range(mq + 1):
                if a + 3 <= mq: aread(a + 3)
                if a == 0:
                    e(f"s_waitcnt lgkmcnt({6 if 3 <= mq else 4})")
                else:
                    younger = 2 * (min(mq, a + 3) - a)
                    extra = (mq + 1) if False else 0
                    e(f"s_waitcnt lgkmcnt({min(15, younger + (nb[0] if nb else 0))})") if False else e(f"s_waitcnt lgkmcnt({younger})")
                for qi, q in enumerate(Q):
                    if q >= a:
                        e(f"v_mfma_f32_16x16x32_bf16 {vr(CACC+4*qi,4)}, {vr(AF+4*(a%4),4)}, {vr(BF[half]+4*(q-a),4)}, {vr(CACC+4*qi,4)}")
            breads(1 - half)
            e(f"v_add_u32 v{VAB}, 64, v{VAB}")
            e(f"v_add_u32 v{VAA}, 64, v{VAA}")
        e(f"s_add_u32 s{S_CNT}, s{S_CNT}, 1")
        e(f"s_cmp_lt_u32 s{S_CNT}, 4")
        e(f"s_cbranch_scc1 {lp}")
        e("s_waitcnt lgkmcnt(0)")
        for qi, q in enumerate(Q):
            e(f"ds_read_b64 {vr(16+2*qi,2)}, v{VUE} offset:{128 + 512*q}")
        e(f"""v_and_b32 v{VT0}, 15, v1
        v_lshrrev_b32 v{VT1}, 4, v1
        v_lshlrev_b32 v{VT2}, 5, v{VT0}
        v_lshl_add_u32 v{VT2}, v{VT1}, 3, v{VT2}
        s_lshl_b32 s{S_T}, s{S_CH}, 12
        v_add_u32 v{VT2}, s{S_T}, v{VT2}
        v_mov_b32 v40, s{S_DV}
        s_waitcnt lgkmcnt(0)""")
        for qi, q in enumerate(Q):
            u = 16 + 2 * qi
            e(f"""v_lshlrev_b32 v32, 16, v{u}
            v_and_b32 v33, 0xffff0000, v{u}
            v_lshlrev_b32 v34, 16, v{u+1}
            v_and_b32 v35, 0xffff0000, v{u+1}
            v_pk_fma_f32 v[32:33], v[32:33], v[40:41], {vr(CACC+4*qi,2)} op_sel_hi:[1,0,1]
            v_pk_fma_f32 v[34:35], v[34:35], v[40:41], {vr(CACC+4*qi+2,2)} op_sel_hi:[1,0,1]
            v_cvt_pk_bf16_f32 v{24+2*qi}, v32, v33
            v_cvt_pk_bf16_f32 v{25+2*qi}, v34, v35""")
        for qi, q in enumerate(Q):
            e(f"ds_write_b64 v{VT2}, {vr(24+2*qi,2)} offset:{A_YIMG + 512*q}")
    nb = None
    v1l = e.newlab("Lcv1"); vend = e.newlab("Lcve")
    e(f"s_cmp_eq_u32 s{S_MH}, 1")
    e(f"s_cbranch_scc1 {v1l}")
    conv_variant([0, 3, 4, 7])
    e(f"s_branch {vend}")
    e.label(v1l)
    conv_variant([1, 2, 5, 6])
    e.label(vend)
    e("s_waitcnt lgkmcnt(0)")
    e("s_barrier")
    P.stamp()
    e(f"""s_lshl_b32 s{S_T}, s{S_CH}, 12
    s_lshl_b32 s{S_T2}, s{S_MH}, 11
    s_add_u32 s{S_T}, s{S_T}, s{S_T2}
    v_lshlrev_b32 v{VT0}, 4, v1
    v_add_u32 v{VT1}, s{S_T}, v{VT0}
    ds_read_b128 v[16:19], v{VT1} offset:{A_YIMG}
    ds_read_b128 v[20:23], v{VT1} offset:{A_YIMG + 1024}
    s_add_u32 s{S_T3}, s{S_C0}, s{S_CH}
    s_lshl_b32 s{S_T3}, s{S_T3}, 12
    s_add_u32 s{S_T3}, s{S_T3}, s{S_T2}
    s_add_u32 s{S_T3}, s{S_T3}, {OFF_YT}
    s_waitcnt lgkmcnt(0)
    buffer_store_dwordx4 v[16:19], v{VT0}, {rs(R_WS)}, s{S_T3} offen sc1
    buffer_store_dwordx4 v[20:23], v{VT0}, {rs(R_WS)}, s{S_T3} offen offset:1024 sc1
    s_waitcnt vmcnt(0)
    s_barrier""")
    e(f"s_cmp_lg_u32 s{S_WAVE}, 0")
    e("s_cbranch_scc1 Lexit")
    calc_tag(e)
    e(f"s_lshl_b32 s{S_T}, s{S_PAIR}, {o.fsh}")
    e(f"s_add_u32 s{S_T}, s{S_T}, {OFF_YF}")
    store_flag(e, S_T, 2, 3)
    e(f"""s_lshl_b32 s{S_T}, s{S_CG}, {5 + o.fsh}
    s_add_u32 s{S_T}, s{S_T}, {OFF_YF}
    v_and_b32 v2, 31, v1
    v_lshlrev_b32 v2, {o.fsh}, v2
    v_add_u32 v2, s{S_T}, v2""")
    P.stamp()
    e("s_mov_b32 exec_hi, 0")
    poll_eq_tag(e, o, 2, 3)
    P.stamp()
    srd(e, R_OUT, S_OUT, 2048 * 1792)
    e(f"""v_lshrrev_b32 v2, 3, v1
    v_and_b32 v3, 7, v1
    v_lshlrev_b32 v3, 4, v3
    v_lshl_add_u32 v10, v2, 12, v3
    v_mul_u32_u24 v2, 1792, v2
    v_add_u32 v11, v2, v3
    s_lshl_b32 s{S_T}, s{S_CG}, 18
    s_lshl_b32 s{S_T2}, s{S_J}, 7
    s_add_u32 s{S_T}, s{S_T}, s{S_T2}
    s_add_u32 s{S_T}, s{S_T}, {OFF_YT}
    s_mul_i32 s{S_T3}, s{S_J}, {64*1792}
    s_lshl_b32 s{S_T2}, s{S_CG}, 7
    s_add_u32 s{S_T3}, s{S_T3}, s{S_T2}""")
    def ld(i, reg):
        e(f"buffer_load_dwordx4 {vr(reg,4)}, v10, {rs(R_WS)}, s{S_T} offen sc1")
        e(f"s_add_u32 s{S_T}, s{S_T}, {8*4096}")
    def st(i, reg):
        e(f"buffer_store_dwordx4 {vr(reg,4)}, v11, {rs(R_OUT)}, s{S_T3} offen")
        e(f"s_add_u32 s{S_T3}, s{S_T3}, {8*1792}")
    transpose64(e, ld, st, A_UC)
    if o.dbgtime:
        labd = e.newlab("Lnodbg")
        e(f"""s_and_b32 s{S_T}, s2, 63
        s_cmp_lg_u32 s{S_T}, 0
        s_cbranch_scc1 {labd}
        s_waitcnt vmcnt(0)
        s_memrealtime s[96:97]
        s_waitcnt lgkmcnt(0)
        s_lshr_b32 s{S_T}, s2, 6
        s_lshl_b32 s{S_T}, s{S_T}, 3
        v_mov_b32 v100, s{S_T}
        v_mov_b32 v102, s98
        v_mov_b32 v103, s96
        global_store_dwordx2 v100, v[102:103], s[{S_DBG}:{S_DBG+1}]""")
        e.label(labd)
    if o.profile:
        e("s_waitcnt vmcnt(0)")
        P.stamp()
        e("s_waitcnt lgkmcnt(0)")
        e("s_sub_u32 s96, s98, s96")
        P.n = 9
        P.flush(100, S_T)
    e("s_endpgm")

    e.label("La_h2")
    P = Prof(e, o, 2)
    e("s_waitcnt lgkmcnt(0)")
    srd(e, R_WS, S_WS, WS_BYTES)
    srd(e, R_X, S_U, 2048 * 896)
    e(f"s_load_dword s{S_EP}, s[{S_WS}:{S_WS+1}], 0")
    P.stamp()
    e(f"""v_lshrrev_b32 v2, 3, v1
    v_and_b32 v3, 7, v1
    v_lshlrev_b32 v3, 4, v3
    v_mul_u32_u24 v10, 896, v2
    v_add_u32 v10, v10, v3
    v_mul_u32_u24 v11, {UT_PITCH}, v2
    v_add_u32 v11, v11, v3
    s_mul_i32 s{S_T}, s{S_J}, {64*896}
    s_lshl_b32 s{S_T2}, s{S_CG}, 7
    s_add_u32 s{S_T}, s{S_T}, s{S_T2}
    s_mul_i32 s{S_T3}, s{S_CG}, {64*UT_PITCH}
    s_add_u32 s{S_T3}, s{S_T3}, {OFF_UT}""")
    nz = e.newlab("Lnz")
    e(f"s_cmp_lg_u32 s{S_J}, 0")
    e(f"s_cbranch_scc1 {nz}")
    e(f"""v_mov_b32 v16, 0
    v_mov_b32 v17, 0
    v_mov_b32 v18, 0
    v_mov_b32 v19, 0
    s_mov_b32 s{S_T2}, s{S_T3}""")
    for i in range(8):
        e(f"buffer_store_dwordx4 v[16:19], v11, {rs(R_WS)}, s{S_T2} offen sc1")
        e(f"s_add_u32 s{S_T2}, s{S_T2}, {8*UT_PITCH}")
    e("s_waitcnt vmcnt(0)")
    e.label(nz)
    e(f"s_lshl_b32 s{S_T2}, s{S_J}, 7")
    e(f"s_add_u32 s{S_T3}, s{S_T3}, s{S_T2}")
    e(f"s_add_u32 s{S_T3}, s{S_T3}, 128")
    def ld2(i, reg):
        e(f"buffer_load_dwordx4 {vr(reg,4)}, v10, {rs(R_X)}, s{S_T} offen")
        e(f"s_add_u32 s{S_T}, s{S_T}, {8*896}")
    def st2(i, reg):
        e(f"buffer_store_dwordx4 {vr(reg,4)}, v11, {rs(R_WS)}, s{S_T3} offen sc1")
        e(f"s_add_u32 s{S_T3}, s{S_T3}, {8*UT_PITCH}")
    if o.h2_stop == 0:
        e("s_endpgm")
    if o.h2_stop == 1:
        for i in range(8): ld2(i, 16 + 4 * i)
        e("s_waitcnt vmcnt(0)")
        e("s_endpgm")
    transpose64(e, ld2, st2 if o.h2_stop != 2 else (lambda i, reg: None), A_UC)
    if o.h2_stop == 2:
        e("s_endpgm")
    e("s_waitcnt vmcnt(0) lgkmcnt(0)")
    calc_tag(e)
    e(f"""s_lshl_b32 s{S_T}, s{S_CG}, 5
    s_add_u32 s{S_T2}, s{S_T}, s{S_J}
    s_lshl_b32 s{S_T2}, s{S_T2}, {o.fsh}
    s_add_u32 s{S_T2}, s{S_T2}, {OFF_UF}""")
    store_flag(e, S_T2, 2, 3)
    if o.h2_stop == 3:
        e("s_endpgm")
    P.stamp()
    if o.h2_late:
        e("s_barrier")
    e(f"""s_lshl_b32 s{S_T}, s{S_T}, {o.fsh}
    s_add_u32 s{S_T}, s{S_T}, {OFF_UF}
    v_and_b32 v2, 31, v1
    v_lshlrev_b32 v2, {o.fsh}, v2
    v_add_u32 v2, s{S_T}, v2
    s_mov_b32 exec_hi, 0""")
    poll_eq_tag(e, o, 2, 3, sleep=o.usleep)
    if o.h2_stop == 4:
        e("s_endpgm")
    P.stamp()
    e(f"""v_lshlrev_b32 v4, 4, v1
    s_mul_i32 s{S_T}, s{S_C0}, {UT_PITCH}
    s_add_u32 s{S_T}, s{S_T}, {OFF_UT}""")
    for ch in range(2):
        e(f"s_mov_b32 m0, {A_UC + ch*UC_CH}")
        e("s_nop 0")
        for i in range(4):
            e(f"buffer_load_dwordx4 v4, {rs(R_WS)}, s{S_T} offen offset:{1024*i} sc1 lds")
        e(f"""s_add_u32 m0, m0, 4096
        s_add_u32 s{S_T2}, s{S_T}, 4096
        s_mov_b64 exec, 0xff
        buffer_load_dwordx4 v4, {rs(R_WS)}, s{S_T2} offen sc1 lds
        s_mov_b64 exec, -1
        s_add_u32 s{S_T}, s{S_T}, {UT_PITCH}""")
    e(f"v_add_u32 v5, {A_UC}, v4")
    e(f"s_mov_b32 s{S_CNT}, 0")
    e("s_waitcnt vmcnt(0)")
    lp = e.newlab("Luc")
    e.label(lp)
    for i in range(5):
        e(f"ds_read_b128 {vr(16+8*i,4)}, v5 offset:{1024*i}")
        e(f"ds_read_b128 {vr(20+8*i,4)}, v5 offset:{1024*i+16}")
    for i in range(5):
        d = 16 + 8 * i
        e(f"s_waitcnt lgkmcnt({min(15, 8 - 2*i + 3*i)})" if False else "s_waitcnt lgkmcnt(0)" if i == 0 else "s_nop 0")
        o1, o2, o3 = 64, 68, 72
        for k in range(4):
            e(f"v_alignbit_b32 v{o1+k}, v{d+k+1}, v{d+k}, 16")
            e(f"v_mov_b32 v{o2+k}, v{d+k+1}")
            e(f"v_alignbit_b32 v{o3+k}, v{d+k+2}, v{d+k+1}, 16")
        if i == 4: e("s_mov_b64 exec, 0xff")
        e(f"ds_write_b128 v5, {vr(o1,4)} offset:{UC_CP + 1024*i}")
        e(f"ds_write_b128 v5, {vr(o2,4)} offset:{2*UC_CP + 1024*i}")
        e(f"ds_write_b128 v5, {vr(o3,4)} offset:{3*UC_CP + 1024*i}")
        if i == 4: e("s_mov_b64 exec, -1")
        e("s_waitcnt lgkmcnt(0)")
    e(f"""v_add_u32 v5, {UC_CH}, v5
    s_add_u32 s{S_CNT}, s{S_CNT}, 1
    s_cmp_lt_u32 s{S_CNT}, 2
    s_cbranch_scc1 {lp}""")
    P.stamp()
    if not o.h2_late:
        e("s_barrier")
    e("s_barrier")
    P.flush(20, S_T)
    e("s_endpgm")


def generate(o):
    e = E()
    hdr = []
    hdr.append(f"; @launch grid=(512,1,1) block=(384,1,1) lds=81920")
    hdr.append('.amdgcn_target "amdgcn-amd-amdhsa--gfx950"')
    hdr.append(".text")
    hdr.append(f".globl {KNAME}")
    hdr.append(".p2align 8")
    hdr.append(f".type {KNAME},@function")
    hdr.append(f"{KNAME}:")
    e("s_cmp_ge_u32 s2, 512")
    e("s_cbranch_scc1 Lexit")
    if o.codepf:
        e("s_getpc_b64 s[6:7]")
        e.label("Lpc0")
    if o.dbgtime: e("s_memrealtime s[98:99]")
    e("s_load_dwordx16 s[8:23], s[0:1], 0")
    e("s_load_dwordx16 s[24:39], s[0:1], 64")
    e("v_and_b32 v1, 63, v0")
    e("v_lshrrev_b32 v2, 6, v0")
    e("s_nop 0")
    e(f"v_readfirstlane_b32 s{S_WAVE}, v2")
    if o.codepf:
        e("s_lshr_b32 s40, s2, 3")
        e("s_and_b32 s40, s40, 31")
        e("s_lshl_b32 s40, s40, 10")
        e("s_cmp_ge_u32 s40, Lcode_end-Lpc0-1024")
        e("s_cbranch_scc1 Lnopf")
        e(f"s_cmp_lg_u32 s{S_WAVE}, 0")
        e("s_cbranch_scc1 Lnopf")
        e("v_lshlrev_b32 v3, 4, v1")
        e("v_add_u32 v3, s40, v3")
        e("global_load_dwordx4 v[124:127], v3, s[6:7]")
        e.label("Lnopf")
    e("s_cmp_ge_u32 s2, 256")
    e("s_cbranch_scc1 Lrole_a")
    if o.do_b:
        gen_b(e, o)
    else:
        e("s_endpgm")
    e.label("Lrole_a")
    gen_a(e, o)
    e.label("Lexit")
    e("s_endpgm")
    emit_tables(e)
    e(".fill 288, 4, 0xbf800000")
    e.label("Lcode_end")
    ftr = f"""
.section .rodata,"a"
.p2align 6
.amdhsa_kernel {KNAME}
  .amdhsa_next_free_vgpr 128
  .amdhsa_next_free_sgpr 102
  .amdhsa_accum_offset 128
  .amdhsa_group_segment_fixed_size 0
  .amdhsa_kernarg_size 128
  .amdhsa_user_sgpr_count 2
  .amdhsa_user_sgpr_kernarg_segment_ptr 1
  .amdhsa_system_sgpr_workgroup_id_x 1
.end_amdhsa_kernel
"""
    return "\n".join(hdr) + "\n" + e.text() + ftr

if __name__ == "__main__":
    o = Opt()
    for a in sys.argv[2:]:
        k, v = a.split("=")
        cur = getattr(o, k)
        setattr(o, k, type(cur)(int(v)))
    open(sys.argv[1], "w").write(generate(o))
```
